```python
import torch

def _softmax(x, axis=-1):
    return torch.softmax(x, dim=axis)
def _gelu(x):
    return torch.nn.functional.gelu(x, approximate="tanh")
def _silu(x):
    return torch.nn.functional.silu(x)
def _sigmoid(x):
    return torch.sigmoid(x)
def _layernorm(x, axis=-1, eps=1e-5):
    m = x.mean(dim=axis, keepdim=True)
    v = x.var(dim=axis, keepdim=True, unbiased=False)
    return (x - m) / torch.sqrt(v + eps)
def _scatter_add(tgt, idx, src, axis=0):
    return tgt.clone().index_add_(axis, idx, src)
def _segment_sum(src, seg, n):
    out = torch.zeros((n,) + src.shape[1:], dtype=src.dtype)
    return out.index_add_(0, seg, src)
def _pad(x, pw):
    flat = tuple(v for pair in reversed(pw) for v in pair)
    return torch.nn.functional.pad(x, flat)

kernel_name = 'concat_heads__mha_block__ssm_conv_s4d__prompt'

def setup_inputs():

    _w = (lambda a: (lambda t: t.to(torch.bfloat16) if t.is_floating_point() else t)(torch.as_tensor(a)))
    def _A_setup():
        B, S, D, H = 1, 2048, 576, 32
        return {
            "x": _w((lambda *s: torch.randn(*s, dtype=torch.bfloat16) * 0.2)(B, S, D)),
            "wqkv": _w((lambda *s: torch.randn(*s, dtype=torch.bfloat16) * 0.2)(D, 3 * D)),
            "wo": _w((lambda *s: torch.randn(*s, dtype=torch.bfloat16) * 0.05)(D, D)),
        }
    _A_in = _A_setup()

    def _B_setup():
        Bsz, L, D, N = 1, 2048, 576, 128
        return {
            "u": _w((lambda *s: torch.randn(*s, dtype=torch.bfloat16) * 0.05)(Bsz, L, D)),
            "log_A_real": _w((lambda *s: torch.randn(*s, dtype=torch.bfloat16) * 6.4)(D, N) * 0.5),
            "A_imag": _w((lambda *s: torch.randn(*s, dtype=torch.bfloat16) * 0.1)(D, N) * 3.14),
            "C_real": _w((lambda *s: torch.randn(*s, dtype=torch.bfloat16) * 0.8)(D, N) / N ** 0.5),
            "C_imag": _w((lambda *s: torch.randn(*s, dtype=torch.bfloat16) * 0.8)(D, N) / N ** 0.5),
            "log_dt": _w((lambda *s: torch.randn(*s, dtype=torch.bfloat16) * 0.1)(D) * 0.5 - 4.0),
            "D_skip": _w((lambda *s: torch.randn(*s, dtype=torch.bfloat16) * 0.1)(D)),
        }
    _B_in = _B_setup()

    return {
        "A_x": _A_in["x"],
        "A_wqkv": _A_in["wqkv"],
        "A_wo": _A_in["wo"],
        "B_u": _B_in["u"],
        "B_log_A_real": _B_in["log_A_real"],
        "B_A_imag": _B_in["A_imag"],
        "B_C_real": _B_in["C_real"],
        "B_C_imag": _B_in["C_imag"],
        "B_log_dt": _B_in["log_dt"],
        "B_D_skip": _B_in["D_skip"],
    }

def reference(A_x, A_wqkv, A_wo, B_u, B_log_A_real, B_A_imag, B_C_real, B_C_imag, B_log_dt, B_D_skip):
    def _A_ref(x, wqkv, wo):
        B, S, D = x.shape
        H = 32
        Dh = D // H
        qkv = (lambda x, *d: x.permute(*d))((x @ wqkv).reshape(B, S, 3, H, Dh), 2, 0, 3, 1, 4)
        q, k, v = qkv[0], qkv[1], qkv[2]
        scores = torch.einsum("bhqd,bhkd->bhqk", q, k) * (Dh ** -0.5)
        p = _softmax(scores, axis=-1)
        o = torch.einsum("bhqk,bhkd->bhqd", p, v)
        return (lambda x, *d: x.permute(*d))(o, 0, 2, 1, 3).reshape(B, S, D) @ wo

    def _B_ref(u, log_A_real, A_imag, C_real, C_imag, log_dt, D_skip):
        L = u.shape[1]
        dt = torch.exp(log_dt)
        A = -torch.exp(log_A_real) + 1j * A_imag
        C = (C_real + 1j * C_imag) * dt[:, None]
        pos = (lambda x, dt: x.to(dt))(torch.arange(L), log_dt.dtype)
        P = torch.exp((A * dt[:, None])[:, :, None] * pos[None, None, :])
        K = 2.0 * torch.einsum("dn,dnl->dl", C, P).real
        L2 = 2 * L
        u_t = (lambda x, *d: x.permute(*d))(u, 0, 2, 1)
        Kf = (lambda x, *a, **k: torch.fft.rfft(x.float(), *a, **k))(K, L2)
        Uf = (lambda x, *a, **k: torch.fft.rfft(x.float(), *a, **k))(u_t, L2)
        y = (lambda x, *a, **k: torch.fft.irfft(x, *a, **k).to(torch.bfloat16))(Uf * Kf[None, :, :], L2)[:, :, :L]
        y = (lambda x, *d: x.permute(*d))(y, 0, 2, 1)
        return y + u * D_skip[None, None, :]

    a = _A_ref(A_x, A_wqkv, A_wo)
    b = _B_ref(B_u, B_log_A_real, B_A_imag, B_C_real, B_C_imag, B_log_dt, B_D_skip)
    return torch.concatenate([a, b], axis=-1)
```

```python
class Asm:
    def __init__(self):
        self.lines = []
    def __call__(self, s):
        for ln in s.split("\n"):
            ln = ln.strip()
            if ln:
                self.lines.append("    " + ln)
    def label(self, l):
        self.lines.append(l + ":")
    def raw(self, s):
        self.lines.append(s)
    def c(self, s):
        self.lines.append("    ; " + s)
    def text(self):
        return "\n".join(self.lines) + "\n"

class Regs:
    def __init__(self, start=0, limit=256):
        self.n = start
        self.limit = limit
    def alloc(self, cnt=1, align=None):
        if align is None:
            align = 1 if cnt == 1 else 2
        self.n = (self.n + align - 1) // align * align
        r = self.n
        self.n += cnt
        assert self.n <= self.limit, f"out of regs {self.n}"
        return r

def vr(b, n=1):
    return f"v{b}" if n == 1 else f"v[{b}:{b+n-1}]"
def sr(b, n=1):
    return f"s{b}" if n == 1 else f"s[{b}:{b+n-1}]"

def kernel_header(a, name):
    a.raw(f".globl {name}")
    a.raw(".p2align 8")
    a.raw(f".type {name},@function")
    a.label(name)

def kernel_desc(name, nvgpr, nsgpr=96):
    acc = (nvgpr + 3) // 4 * 4
    return f""".p2align 6
.amdhsa_kernel {name}
  .amdhsa_next_free_vgpr {nvgpr}
  .amdhsa_next_free_sgpr {nsgpr}
  .amdhsa_accum_offset {acc}
  .amdhsa_group_segment_fixed_size 0
  .amdhsa_kernarg_size 104
  .amdhsa_user_sgpr_count 2
  .amdhsa_user_sgpr_kernarg_segment_ptr 1
  .amdhsa_system_sgpr_workgroup_id_x 1
.end_amdhsa_kernel
"""

def srd(a, d, base, nbytes):
    a(f"s_mov_b32 s{d}, s{base}")
    a(f"s_mov_b32 s{d+1}, s{base+1}")
    a(f"s_mov_b32 s{d+2}, {nbytes:#x}")
    a(f"s_mov_b32 s{d+3}, 0x00020000")

WS_QKVT = 0
WS_O = 0x700000
WS_KEXP = 0xA00000
WS_UP = 0xD00000
WS_BYTES = 0x1200000

WS_STAMP = 0x1000000
STAMP = False
class Stamps:
    def __init__(self, a, base=64, kid=0):
        self.a, self.base, self.n, self.kid = a, base, 0, kid
    def stamp(self):
        if not STAMP_ON(): return
        self.a(f"s_memtime s[{self.base+2*self.n}:{self.base+2*self.n+1}]")
        self.n += 1
    def real(self):
        if not STAMP_ON(): return
        self.a(f"s_memrealtime s[{self.base+2*self.n}:{self.base+2*self.n+1}]")
        self.n += 1
    def flush(self, srd, swave, vtmp, vtmp2):
        if not STAMP_ON(): return
        a = self.a
        a("s_mov_b64 exec, 1")
        a("s_waitcnt lgkmcnt(0)")
        a(f"s_lshl_b32 s62, s2, 4")
        a(f"s_add_u32 s62, s62, s{swave}")
        a(f"s_lshl_b32 s62, s62, 6")
        a(f"s_add_u32 s62, s62, {WS_STAMP + self.kid*0x40000*2:#x}")
        a(f"v_mov_b32 v{vtmp}, 0")
        for i in range(self.n):
            a(f"v_mov_b32 v{vtmp2}, s{self.base+2*i}")
            a(f"buffer_store_dword v{vtmp2}, v{vtmp}, s[{srd}:{srd+3}], s62 offen offset:{4*i}")
import os
def STAMP_ON():
    return os.environ.get("STAMP") == "1"

P_X, P_WQKV, P_WO, P_U, P_LAR, P_AIM, P_CRE, P_CIM, P_LDT, P_DSK, P_OUT, P_DBG, P_WS = 16, 18, 20, 22, 24, 26, 28, 30, 32, 34, 36, 38, 40
def load_kernargs(a):
    a("s_load_dwordx16 s[16:31], s[0:1], 0")
    a("s_load_dwordx8 s[32:39], s[0:1], 64")
    a("s_load_dwordx2 s[40:41], s[0:1], 96")
KP = 4224
WS_UT = WS_UP
```

```python
from asmlib import *
import os

PK = 4160
PV = 4112
VB = 18 * PK
ONES = VB + 18 * PV
QB = ONES + 4096
ATTN_LDS = QB + 8 * 1152
OOB = 0x30000

def gen_attn(a, name="attn_kernel", prio_n=46, bar_lo=5, bar_hi=12, zero_rows=True):
    prio_n = int(os.environ.get("PRIO_N", prio_n)); bar_lo = int(os.environ.get("BAR_LO", bar_lo)); bar_hi = int(os.environ.get("BAR_HI", bar_hi))
    kernel_header(a, name)
    R = Regs(1)
    vt0, vt1, vt2, vt3 = [R.alloc() for _ in range(4)]
    vlane = R.alloc()
    vKa, vEa, vVa, vIdx, vOff, vD = [R.alloc() for _ in range(6)]
    vQ = R.alloc(4, 4)
    vQA = R.alloc(2); vQB = R.alloc(2)
    vKM = [R.alloc(4, 4) for _ in range(2)]
    vKE = [R.alloc(2) for _ in range(2)]
    vV0 = [R.alloc(4, 4) for _ in range(2)]
    vV1 = [R.alloc(4, 4) for _ in range(2)]
    vO = R.alloc(16, 4)
    vS = [R.alloc(16, 4) for _ in range(4)]
    nv = R.n

    a("s_cmp_ge_u32 s2, 256")
    a(f"s_cbranch_scc1 {name}_end")
    st = Stamps(a, kid=1)
    st.real(); st.stamp()
    a("s_load_dwordx2 s[4:5], s[0:1], 96")
    a(f"v_lshrrev_b32 v{vt0}, 6, v0")
    a(f"v_and_b32 v{vlane}, 63, v0")
    a(f"v_readfirstlane_b32 s14, v{vt0}")
    a("s_and_b32 s12, s2, 7")
    a("s_lshl_b32 s12, s12, 2")
    a("s_bfe_u32 s13, s2, 0x20003")
    a("s_add_u32 s12, s12, s13")
    a("s_lshr_b32 s13, s2, 5")
    a("s_mul_i32 s17, s12, 0x12000")
    a(f"s_add_u32 s15, s17, {576*4096:#x}")
    a(f"s_add_u32 s16, s17, {1152*4096:#x}")
    a("s_lshl_b32 s18, s14, 12")
    a("s_add_u32 s20, s15, s18")
    a("s_add_u32 s21, s20, 0x8000")
    a("s_add_u32 s22, s16, s18")
    a("s_add_u32 s23, s22, 0x8000")
    a(f"s_mul_i32 s25, s14, {PK}")
    a(f"s_add_u32 s26, s25, {8*PK}")
    a(f"s_mul_i32 s27, s14, {PV}")
    a(f"s_add_u32 s27, s27, {VB}")
    a(f"s_add_u32 s28, s27, {8*PV}")
    a("s_and_b32 s30, s14, 1")
    a("s_lshr_b32 s31, s14, 2")
    a("s_lshl_b32 s31, s31, 10")
    a("s_bitcmp1_b32 s14, 1")
    a("s_cselect_b32 s24, s16, s15")
    a(f"s_mov_b32 s29, {16*PK}")
    a(f"s_mov_b32 s32, {PK}")
    a(f"s_cselect_b32 s29, {VB + 16*PV}, s29")
    a(f"s_cselect_b32 s32, {PV}, s32")
    a("s_mul_i32 s32, s32, s30")
    a("s_add_u32 s29, s29, s32")
    a("s_add_u32 s29, s29, s31")
    a("s_lshl_b32 s30, s30, 12")
    a("s_add_u32 s24, s24, s30")
    a("s_add_u32 s24, s24, s31")
    a("s_add_u32 s24, s24, 0x10000")
    a("s_lshl_b32 s33, s13, 8")
    a("s_lshl_b32 s34, s14, 5")
    a("s_add_u32 s33, s33, s34")
    a("s_lshl_b32 s34, s33, 1")
    a("s_add_u32 s34, s34, s17")
    a("s_add_u32 s35, s34, 0x10000")
    a("s_mul_i32 s37, s14, 1152")
    a(f"s_add_u32 s37, s37, {QB}")
    a("s_add_u32 s38, s37, 1024")
    a(f"v_lshrrev_b32 v{vt0}, 2, v{vlane}")
    a(f"v_lshlrev_b32 v{vt0}, 12, v{vt0}")
    a(f"v_and_b32 v{vt1}, 3, v{vlane}")
    a(f"v_lshl_add_u32 v{vt0}, v{vt1}, 4, v{vt0}")
    a(f"v_lshlrev_b32 v{vD}, 4, v{vlane}")
    a("s_waitcnt lgkmcnt(0)")
    srd(a, 8, 4, WS_BYTES)
    st.stamp()
    def dma(m0, soff, imm, voff=vD):
        a(f"s_mov_b32 m0, s{m0}")
        a("s_nop 0")
        a(f"buffer_load_dwordx4 v{voff}, s[8:11], s{soff} offen offset:{imm} lds")
    rows = ((25, 20), (26, 21), (27, 22), (28, 23))
    dma(37, 34, 0, vt0)
    a("s_mov_b64 exec, 0xff")
    dma(38, 35, 0, vt0)
    a("s_mov_b64 exec, -1")
    dma(29, 24, 0)
    for (m, s) in rows: dma(m, s, 0)
    later = [(m, s, 1024) for (m, s) in rows] + [(29, 24, 2048)] + [(m, s, 1024*c) for c in (2, 3) for (m, s) in rows]
    a("s_cmp_lt_u32 s14, 4")
    a(f"s_cbranch_scc1 {name}_noprio")
    a("s_setprio 1")
    a.label(f"{name}_noprio")
    a(f"v_and_b32 v{vt1}, 31, v{vlane}")
    a(f"v_add_u32 v{vt1}, s33, v{vt1}")
    a(f"v_lshrrev_b32 v{vt3}, 5, v{vlane}")
    a(f"s_mul_i32 s36, s12, 36")
    a(f"s_add_u32 s36, s36, {WS_O:#x}")
    a(f"v_mul_u32_u24 v{vOff}, 1152, v{vt1}")
    a(f"v_lshl_add_u32 v{vOff}, v{vt3}, 4, v{vOff}")
    a(f"v_mov_b32 v{vV0[0]}, 0x3f803f80")
    a(f"v_mov_b32 v{vV0[0]+1}, 0x3f803f80")
    a(f"v_lshlrev_b32 v{vt0}, 3, v0")
    a(f"v_add_u32 v{vt0}, {ONES}, v{vt0}")
    a(f"ds_write_b64 v{vt0}, {vr(vV0[0],2)}")
    a(f"v_bfe_u32 v{vt0}, v{vlane}, 2, 2")
    a(f"v_and_b32 v{vt1}, 3, v{vlane}")
    a(f"v_lshlrev_b32 v{vt1}, 3, v{vt1}")
    a(f"v_and_b32 v{vt2}, 16, v{vlane}")
    a(f"v_lshl_add_u32 v{vt1}, v{vt2}, 1, v{vt1}")
    a(f"v_lshl_add_u32 v{vt2}, v{vt3}, 3, v{vt0}")
    a(f"v_mul_u32_u24 v{vKa}, {PK}, v{vt2}")
    a(f"v_add_u32 v{vKa}, v{vKa}, v{vt1}")
    vQa, vQe = vS[3], vS[3] + 1
    a(f"v_lshl_add_u32 v{vQa}, v{vt2}, 6, v{vt1}")
    a(f"v_add_u32 v{vQa}, s37, v{vQa}")
    a(f"v_and_b32 v{vQe}, 1, v{vt0}")
    a(f"v_lshl_add_u32 v{vQe}, v{vQe}, 6, v{vt1}")
    a(f"v_add_u32 v{vQe}, s38, v{vQe}")
    a(f"v_mul_u32_u24 v{vEa}, {PK}, v{vt0}")
    a(f"v_add_u32 v{vEa}, {16*PK}, v{vEa}")
    a(f"v_cmp_lt_u32 vcc, 1, v{vt0}")
    a(f"v_mov_b32 v{vt2}, {ONES}")
    a(f"v_lshl_add_u32 v{vt1}, v{vt3}, 6, v{vt1}")
    a(f"v_cndmask_b32 v{vEa}, v{vEa}, v{vt2}, vcc")
    a(f"v_add_u32 v{vEa}, v{vEa}, v{vt1}")
    a(f"v_and_b32 v{vt0}, 31, v{vlane}")
    a(f"v_and_b32 v{vt1}, 0x13, v{vt0}")
    a(f"v_and_b32 v{vt2}, 4, v{vt0}")
    a(f"v_lshl_add_u32 v{vt1}, v{vt2}, 1, v{vt1}")
    a(f"v_and_b32 v{vt2}, 8, v{vt0}")
    a(f"v_lshrrev_b32 v{vt2}, 1, v{vt2}")
    a(f"v_add_u32 v{vt1}, v{vt1}, v{vt2}")
    a(f"v_cmp_lt_u32 vcc, 18, v{vt0}")
    a(f"v_mul_u32_u24 v{vVa}, {PV}, v{vt1}")
    a(f"v_lshl_add_u32 v{vVa}, v{vt3}, 4, v{vVa}")
    a(f"v_add_u32 v{vVa}, {VB}, v{vVa}")
    a(f"v_mov_b32 v{vt2}, {OOB}")
    a(f"v_cndmask_b32 v{vVa}, v{vVa}, v{vt2}, vcc")
    a(f"v_mov_b32 v{vIdx}, 0xdddddddd")
    for i in range(16):
        a(f"v_mov_b32 v{vO+i}, 0")
    a(f"v_cmp_gt_u32 s[40:41], 32, v{vlane}")
    a("s_waitcnt vmcnt(5)")
    a(f"ds_read_b64_tr_b16 {vr(vQ,2)}, v{vQa}")
    a(f"ds_read_b64_tr_b16 {vr(vQ+2,2)}, v{vQa} offset:256")
    a(f"ds_read_b64_tr_b16 {vr(vQA,2)}, v{vQe}")
    st.stamp()
    a("s_waitcnt vmcnt(0) lgkmcnt(0)")
    st.stamp()
    a("s_barrier")

    def ldK(t):
        r = vKM[t & 1]
        a(f"ds_read_b64_tr_b16 {vr(r,2)}, v{vKa} offset:{64*t}")
        a(f"ds_read_b64_tr_b16 {vr(r+2,2)}, v{vKa} offset:{4*PK + 64*t}")
    def ldE(p):
        a(f"ds_read_b64_tr_b16 {vr(vKE[p&1],2)}, v{vEa} offset:{128*p}")
    def ldV0(t): a(f"ds_read_b128 {vr(vV0[t&1],4)}, v{vVa} offset:{64*t}")
    def ldV1(t): a(f"ds_read_b128 {vr(vV1[t&1],4)}, v{vVa} offset:{64*t+32}")
    def QKe(t, S=None):
        S = vS[t & 3] if S is None else S
        q = vQB if t & 1 else vQA
        a(f"v_mfma_f32_32x32x8_bf16 {vr(S,16)}, {vr(vKE[(t>>1)&1],2)}, {vr(q,2)}, 0")
    def QKm(t, S=None):
        S = vS[t & 3] if S is None else S
        a(f"v_mfma_f32_32x32x16_bf16 {vr(S,16)}, {vr(vKM[t&1],4)}, {vr(vQ,4)}, {vr(S,16)}")
    def PV1(t): a(f"v_smfmac_f32_32x32x32_bf16 {vr(vO,16)}, {vr(vV0[t&1],4)}, {vr(vS[t&3],8)}, v{vIdx}")
    def PV2(t): a(f"v_smfmac_f32_32x32x32_bf16 {vr(vO,16)}, {vr(vV1[t&1],4)}, {vr(vS[t&3]+8,8)}, v{vIdx}")
    def EXP(t, lo, hi):
        for i in range(lo, hi):
            a(f"v_exp_f32 v{vS[t&3]+i}, v{vS[t&3]+i}")
    def maxtree(dst, S, n, first):
        i = 0
        if first:
            a(f"v_max3_f32 v{dst}, v{S}, v{S+1}, v{S+2}"); i = 3
        while i + 1 < n:
            a(f"v_max3_f32 v{dst}, v{dst}, v{S+i}, v{S+i+1}"); i += 2
        if i < n:
            a(f"v_max_f32 v{dst}, v{dst}, v{S+i}")
    def xhalf_max(m, tmp):
        a(f"v_mov_b32 v{tmp}, v{m}")
        a("s_nop 1")
        a(f"v_permlane32_swap_b32 v{m}, v{tmp}")
        a("s_nop 1")
        a(f"v_max_f32 v{m}, v{m}, v{tmp}")

    a.c("first tile: shift estimate = max over keys 0..31")
    ldE(0); ldK(0); ldK(1); ldE(1); ldV0(0); ldV1(0)
    a(f"v_cndmask_b32 v{vQB}, v{vQA}, 0, s[40:41]")
    a(f"v_cndmask_b32 v{vQA}, 0, v{vQA}, s[40:41]")
    a(f"v_mov_b32 v{vQA+1}, 0")
    a(f"v_mov_b32 v{vQB+1}, 0")
    a("s_waitcnt lgkmcnt(5)")
    QKe(0, vS[2]); QKm(0, vS[2])
    for _ in range(4): dma(*later.pop(0))
    maxtree(vt0, vS[2], 16, True)
    xhalf_max(vt0, vt1)
    a(f"v_cvt_pk_bf16_f32 v{vt0}, -v{vt0}, 0")
    a(f"v_cndmask_b32 v{vQA+1}, 0, v{vt0}, s[40:41]")
    a(f"v_cndmask_b32 v{vQB+1}, v{vt0}, 0, s[40:41]")
    a("s_waitcnt lgkmcnt(0)")
    QKe(0); QKm(0)
    ldK(2)
    QKe(1); QKm(1)
    for _ in range(3): dma(*later.pop(0))
    st.stamp()
    NT = 64
    for t in range(NT):
        a.c(f"tile {t}")
        if t in (bar_lo, bar_hi):
            assert not later
            if t == bar_hi: st.stamp()
            if bar_lo != bar_hi:
                a("s_cmp_lt_u32 s14, 4")
                a(f"s_cbranch_scc{0 if t == bar_lo else 1} {name}_nobar{t}")
            a("s_waitcnt vmcnt(0)")
            a("s_barrier")
            a.label(f"{name}_nobar{t}")
            if t == bar_hi: st.stamp()
        if t == prio_n:
            a("s_setprio 0")
        a("s_waitcnt lgkmcnt(0)")
        EXP(t, 0, 2)
        if t > 0: PV2(t-1)
        if t + 1 < NT:
            ldV1(t+1); ldV0(t+1)
        EXP(t, 2, 6)
        if t + 2 < NT: QKe(t+2)
        if t + 3 < NT: ldK(t+3)
        if later: dma(*later.pop(0))
        EXP(t, 6, 10)
        if t + 2 < NT: QKm(t+2)
        if (t & 1) and (t + 3) < NT: ldE((t+3)//2)
        if later: dma(*later.pop(0))
        EXP(t, 10, 14)
        PV1(t)
        EXP(t, 14, 16)
    a("s_nop 1")
    PV2(NT-1)
    a("s_nop 15")
    st.stamp()
    vL = vt2
    def bcast_l():
        a(f"v_mov_b32 v{vL}, v{vO+10}")
        a(f"v_mov_b32 v{vt3}, v{vO+10}")
        a("s_nop 1")
        a(f"v_permlane32_swap_b32 v{vL}, v{vt3}")
        a("s_nop 1")
    a.c("safety check of the shift estimate")
    bcast_l()
    a(f"v_mov_b32 v{vt0}, v{vL}")
    for i in range(10):
        a(f"v_fma_f32 v{vt0}, v{vO+i}, 0, v{vt0}")
    a("s_mov_b32 s42, 0x2b800000")
    a("s_mov_b32 s43, 0x5d800000")
    a(f"v_cmp_nle_f32 s[44:45], s42, v{vt0}")
    a(f"v_cmp_nge_f32 vcc, s43, v{vt0}")
    a("s_or_b64 vcc, vcc, s[44:45]")
    a(f"s_cbranch_vccnz {name}_fallback")
    a.label(f"{name}_store")
    a(f"v_rcp_f32 v{vt0}, v{vL}")
    a("s_nop 0")
    for i in range(10):
        a(f"v_mul_f32 v{vO+i}, v{vO+i}, v{vt0}")
    for j in range(4):
        a(f"v_cvt_pk_bf16_f32 v{vQ+j}, v{vO+2*j}, v{vO+2*j+1}")
    a(f"v_cvt_pk_bf16_f32 v{vt1}, v{vO+8}, v{vO+9}")
    a(f"buffer_store_dwordx4 {vr(vQ,4)}, v{vOff}, s[8:11], s36 offen")
    a("s_mov_b64 exec, s[40:41]")
    a(f"buffer_store_dword v{vt1}, v{vOff}, s[8:11], s36 offen offset:32")
    if STAMP_ON(): a("s_waitcnt vmcnt(0)")
    st.stamp(); st.real()
    st.flush(8, 14, vt0, vt1)
    a.label(f"{name}_end")
    a("s_endpgm")

    a.label(f"{name}_fallback")
    a.c("exact path: true row max, then a second sweep")
    a(f"v_mov_b32 v{vQA+1}, 0")
    a(f"v_mov_b32 v{vQB+1}, 0")
    a(f"v_mov_b32 v{vt0}, 0xff800000")
    for ps in range(2):
        a("s_mov_b32 s46, 32")
        a.label(f"{name}_fb{ps}")
        ldE(0); ldK(0); ldK(1)
        if ps:
            ldV0(0); ldV1(0); ldV0(1); ldV1(1)
        a("s_waitcnt lgkmcnt(0)")
        QKe(0); QKm(0); QKe(1); QKm(1)
        a("s_nop 15")
        for r in (vKa, vEa, vVa):
            a(f"v_add_u32 v{r}, 128, v{r}")
        if ps == 0:
            maxtree(vt0, vS[0], 16, False)
            maxtree(vt0, vS[1], 16, False)
        else:
            for t in range(2):
                for i in range(16):
                    a(f"v_sub_f32 v{vS[t]+i}, v{vS[t]+i}, v{vt0}")
                EXP(t, 0, 16)
            a("s_nop 1")
            PV1(0); PV2(0); PV1(1); PV2(1)
        a("s_sub_u32 s46, s46, 1")
        a("s_cmp_lg_u32 s46, 0")
        a(f"s_cbranch_scc1 {name}_fb{ps}")
        if ps == 0:
            xhalf_max(vt0, vt1)
            for r in (vKa, vEa, vVa):
                a(f"v_subrev_u32 v{r}, 4096, v{r}")
            for i in range(16):
                a(f"v_mov_b32 v{vO+i}, 0")
    a("s_nop 15")
    bcast_l()
    a(f"s_branch {name}_store")
    return nv
```

```python
from asmlib import *
import math

def gemm_lds(NT):
    CH = 2*NT if NT % 2 else 2*NT + 2
    NW = math.ceil(16 * CH / 64)
    return 4 * (16384 + 4 * NW * 1024)

def gen_gemm(a, name, mode, NT, st=None):
    CH = 2*NT if NT % 2 else 2*NT + 2
    PW = CH * 16
    NW = math.ceil(16 * CH / 64)
    WR = NW * 1024
    SLOT = 16384 + 4 * WR
    PER = 4 + NW
    NS = 4
    pitchW = 3456 if mode == "qkv" else 1152
    a("s_cmp_lt_u32 s14, 4")
    a(f"s_cbranch_scc1 {name}_compute")
    if mode == "qkv":
        srd(a, 4, P_X, 2048*1152); srd(a, 8, P_WQKV, 576*3456)
    else:
        srd(a, 4, P_WS, WS_BYTES); srd(a, 8, P_WO, 576*1152)
    R = Regs(1)
    t0, t1, t2, t3 = [R.alloc() for _ in range(4)]
    vX = [R.alloc() for _ in range(4)]
    vW = [R.alloc() for _ in range(NW)]
    a("s_sub_u32 s44, s14, 4")
    a("s_lshl_b32 s45, s44, 5")
    a("s_add_u32 s45, s45, s12")
    a("s_mul_i32 s45, s45, 1152")
    if mode != "qkv": a(f"s_add_u32 s45, s45, {WS_O:#x}")
    a("s_lshr_b32 s46, s44, 1")
    a("s_lshl_b32 s46, s46, 5")
    a("s_and_b32 s47, s44, 1")
    a("s_lshl_b32 s47, s47, 2")
    a("s_add_u32 s46, s46, s47")
    a(f"s_mul_i32 s46, s46, {pitchW}")
    a("s_lshl_b32 s47, s13, 1")
    a("s_add_u32 s46, s46, s47")
    a("s_lshl_b32 s48, s44, 12")
    a(f"s_mul_i32 s49, s44, {WR}")
    a("s_add_u32 s49, s49, 16384")
    a(f"v_lshrrev_b32 v{t0}, 3, v0")
    a(f"v_and_b32 v{t1}, 7, v0")
    for i in range(4):
        a(f"v_add_u32 v{t2}, {8*i}, v{t0}")
        a(f"v_bfe_u32 v{t3}, v{t2}, 1, 3")
        a(f"v_xor_b32 v{t3}, v{t3}, v{t1}")
        if mode == "qkv":
            a(f"v_bfe_u32 v{vX[i]}, v{t2}, 2, 2")
            a(f"v_and_b32 v{t2}, 3, v{t2}")
            a(f"v_lshl_add_u32 v{t2}, v{vX[i]}, 3, v{t2}")
            if i >> 1: a(f"v_add_u32 v{t2}, 4, v{t2}")
        a(f"v_mul_u32_u24 v{vX[i]}, 1152, v{t2}")
        a(f"v_lshl_add_u32 v{vX[i]}, v{t3}, 4, v{vX[i]}")
    magic = math.ceil(65536 / CH)
    for idv in range(NW*64): assert (idv * magic) >> 16 == idv // CH
    a("s_mov_b32 s50, 0x40000000")
    for i in range(NW):
        a(f"v_add_u32 v{t0}, {64*i}, v0")
        a(f"v_mul_u32_u24 v{t1}, {magic}, v{t0}")
        a(f"v_lshrrev_b32 v{t1}, 16, v{t1}")
        a(f"v_mul_u32_u24 v{t2}, {CH}, v{t1}")
        a(f"v_sub_u32 v{t2}, v{t0}, v{t2}")
        a(f"v_and_b32 v{t3}, 12, v{t1}")
        a(f"v_add_u32 v{t3}, v{t3}, v{t1}")
        a(f"v_mul_u32_u24 v{vW[i]}, {pitchW}, v{t3}")
        a(f"v_lshl_add_u32 v{vW[i]}, v{t2}, 4, v{vW[i]}")
        need_p = 64*(i+1) > 16*CH
        if need_p or CH != 2*NT:
            a(f"v_mov_b32 v{t3}, s50")
            if need_p:
                a(f"v_cmp_lt_u32 vcc, 15, v{t1}")
                a("s_nop 1")
                a(f"v_cndmask_b32 v{vW[i]}, v{vW[i]}, v{t3}, vcc")
            if CH != 2*NT:
                a(f"v_cmp_le_u32 vcc, {2*NT}, v{t2}")
                a("s_nop 1")
                a(f"v_cndmask_b32 v{vW[i]}, v{vW[i]}, v{t3}, vcc")
    def issue(s):
        slot = (s % NS) * SLOT
        a(f"s_add_u32 s51, s45, {128*s}")
        a(f"s_add_u32 s52, s46, {64*s*pitchW}")
        for i in range(NW):
            a(f"s_add_u32 m0, s49, {slot + 1024*i}")
            a("s_nop 0")
            a(f"buffer_load_dwordx4 v{vW[i]}, s[8:11], s52 offen lds")
        for i in range(4):
            a(f"s_add_u32 m0, s48, {slot + 1024*i}")
            a("s_nop 0")
            a(f"buffer_load_dwordx4 v{vX[i]}, s[4:7], s51 offen lds")
    AH = 2
    for s in range(AH): issue(s)
    issued = AH - 1
    for s in range(9):
        a(f"s_waitcnt vmcnt({(issued - s) * PER})")
        a("s_barrier")
        if s + AH <= 8:
            issue(s + AH); issued = s + AH
    a("s_endpgm")
    nv_l = R.n
    a.label(f"{name}_compute")
    R = Regs(1)
    vXa = [[R.alloc() for _ in range(2)] for _ in range(2)]
    vWa = [R.alloc() for _ in range(2)]
    vOff = R.alloc()
    FX = [[R.alloc(4, 4) for _ in range(2)] for _ in range(2)]
    FW = [[R.alloc(4, 4) for _ in range(NT)] for _ in range(2)]
    ACC = [[R.alloc(4, 4) for _ in range(NT)] for _ in range(2)]
    t0, t1, t2, t3 = [FX[1][0] + i for i in range(4)]
    if mode == "qkv": srd(a, 4, P_WS, WS_BYTES)
    else: srd(a, 4, P_OUT, 2048*2304)
    a(f"v_and_b32 v{t0}, 15, v0")
    a(f"v_lshrrev_b32 v{t1}, 4, v0")
    a(f"v_bfe_u32 v{t2}, v0, 1, 3")
    a(f"v_xor_b32 v{t2}, v{t2}, v{t1}")
    a("s_lshl_b32 s44, s14, 12")
    a(f"v_lshlrev_b32 v{t3}, 7, v{t0}")
    a(f"v_add_u32 v{t3}, s44, v{t3}")
    a(f"v_lshl_add_u32 v{vXa[0][0]}, v{t2}, 4, v{t3}")
    a(f"v_xor_b32 v{vXa[0][1]}, 64, v{vXa[0][0]}")
    a(f"v_add_u32 v{vXa[1][0]}, {2*SLOT}, v{vXa[0][0]}")
    a(f"v_add_u32 v{vXa[1][1]}, {2*SLOT}, v{vXa[0][1]}")
    a(f"v_lshrrev_b32 v{t2}, 2, v0")
    a(f"v_mul_u32_u24 v{vWa[0]}, {PW}, v{t2}")
    a(f"v_and_b32 v{t2}, 3, v0")
    a(f"v_lshl_add_u32 v{vWa[0]}, v{t2}, 3, v{vWa[0]}")
    a(f"v_add_u32 v{vWa[0]}, 16384, v{vWa[0]}")
    a(f"v_add_u32 v{vWa[1]}, {2*SLOT}, v{vWa[0]}")
    a("s_lshl_b32 s44, s14, 5")
    a("s_add_u32 s44, s44, s12")
    if mode == "qkv":
        a(f"v_lshlrev_b32 v{vOff}, 12, v{t0}")
        a(f"v_lshl_add_u32 v{vOff}, v{t1}, 4, v{vOff}")
        a("s_lshl_b32 s45, s13, 12")
        a("s_lshl_b32 s44, s44, 1")
        a("s_add_u32 s45, s45, s44")
        C = (18 ** -0.5) * 1.4426950408889634
        import struct
        cb = struct.unpack("<I", struct.pack("<f", C))[0]
        a("s_cmp_lt_u32 s13, 576")
        a(f"s_cselect_b32 s46, {cb:#x}, 1.0")
        a("s_mov_b32 s47, s46")
    else:
        a(f"v_mul_u32_u24 v{vOff}, 2304, v{t0}")
        a(f"v_lshl_add_u32 v{vOff}, v{t1}, 3, v{vOff}")
        a("s_mul_i32 s45, s44, 2304")
        a("s_lshl_b32 s44, s13, 1")
        a("s_add_u32 s45, s45, s44")
        a(f"s_add_u32 s46, s45, {16*2304}")
    def reads(u):
        s, kk = u >> 1, u & 1
        sl = s % NS; hf = sl >> 1; so = (sl & 1) * SLOT
        L = []
        for it in range(2):
            L.append(f"ds_read_b128 {vr(FX[u&1][it],4)}, v{vXa[hf][kk]} offset:{so + 2048*it}")
        for j in range(NT):
            for y in range(2):
                L.append(f"ds_read_b64_tr_b16 {vr(FW[u&1][j]+2*y,2)}, v{vWa[hf]} offset:{so + WR*(2*kk+y) + 32*j}")
        return L
    def mfmas(u):
        L = []
        for j in range(NT):
            for it in range(2):
                c = "0" if u == 0 else vr(ACC[it][j], 4)
                x, w = vr(FX[u&1][it], 4), vr(FW[u&1][j], 4)
                if mode == "qkv": L.append(f"v_mfma_f32_16x16x32_bf16 {vr(ACC[it][j],4)}, {x}, {w}, {c}")
                else:             L.append(f"v_mfma_f32_16x16x32_bf16 {vr(ACC[it][j],4)}, {w}, {x}, {c}")
        return L
    if st: st.stamp()
    a("s_barrier")
    if st: st.stamp()
    for l in reads(0): a(l)
    for u in range(18):
        a("s_waitcnt lgkmcnt(0)")
        rd = []
        if u + 1 < 18:
            if (u + 1) % 2 == 0:
                a("s_barrier")
                if st and u in (3, 9, 15): st.stamp()
            rd = reads(u + 1)
        mm = mfmas(u)
        for m in mm:
            a(m)
            for _ in range(2):
                if rd: a(rd.pop(0))
        assert not rd
    if st: st.stamp()
    a("s_nop 7")
    if mode == "qkv":
        for j in range(NT):
            d = FW[0][j]
            for it in range(2):
                for h in range(2):
                    r = ACC[it][j] + 2*h
                    a(f"v_pk_mul_f32 {vr(r,2)}, {vr(r,2)}, s[46:47]")
            for it in range(2):
                for h in range(2):
                    r = ACC[it][j] + 2*h
                    a(f"v_cvt_pk_bf16_f32 v{d+2*it+h}, v{r}, v{r+1}")
            a(f"buffer_store_dwordx4 {vr(d,4)}, v{vOff}, s[4:7], s45 offen")
            if j + 1 < NT: a("s_add_u32 s45, s45, 0x10000")
    else:
        for j in range(NT):
            d = FW[0][j]
            for it in range(2):
                for h in range(2):
                    r = ACC[it][j] + 2*h
                    a(f"v_cvt_pk_bf16_f32 v{d+2*it+h}, v{r}, v{r+1}")
            a(f"buffer_store_dwordx2 {vr(d,2)}, v{vOff}, s[4:7], s45 offen offset:{32*j}")
            a(f"buffer_store_dwordx2 {vr(d+2,2)}, v{vOff}, s[4:7], s46 offen offset:{32*j}")
    if st:
        a("s_waitcnt vmcnt(0)")
        st.stamp(); st.real()
        srd(a, 4, P_WS, WS_BYTES)
        st.flush(4, 14, t0, t1)
    a("s_endpgm")
    return max(nv_l, R.n)
```

```python
from asmlib import *
import k_gemm
CP = 4160
UO = 4 * CP
CH_LDS = 4 * CP + 4608 + 64
NT3 = 6

def gen_conv(a, name, st=None):
    assert CH_LDS % 256 == 64
    R = Regs(1)
    t0, t1, t2, t3 = [R.alloc() for _ in range(4)]
    vA, vB, vY = [R.alloc() for _ in range(3)]
    FA = [[R.alloc(4, 4) for _ in range(8)] for _ in range(2)]
    FB = [[R.alloc(4, 4) for _ in range(8)] for _ in range(2)]
    ACC = [R.alloc(4, 4) for _ in range(8)]
    srd(a, 4, P_WS, WS_BYTES)
    srd(a, 8, P_OUT, 2048*2304)
    a("s_and_b32 s44, s14, 3")
    a("s_lshr_b32 s45, s14, 2")
    a("s_lshl_b32 s46, s12, 2")
    a("s_add_u32 s46, s46, s44")
    a(f"s_mul_i32 s47, s44, {CH_LDS}")
    a(f"v_lshlrev_b32 v{t0}, 4, v0")
    a(f"s_mul_i32 s48, s46, {KP}")
    a(f"s_add_u32 s48, s48, {WS_KEXP + 128:#x}")
    a("s_lshl_b32 s49, s45, 2")
    a("s_sub_u32 s48, s48, s49")
    a("s_sub_u32 s49, s48, 2")
    a(f"s_mul_i32 s50, s45, {2*CP}")
    a("s_add_u32 s50, s50, s47")
    a("s_add_u32 s50, s50, 64")
    a("s_lshl_b32 s51, s46, 12")
    a("s_lshl_b32 s52, s45, 11")
    a("s_add_u32 s51, s51, s52")
    a(f"s_add_u32 s51, s51, {WS_UT:#x}")
    a("s_add_u32 s52, s52, s47")
    a(f"s_add_u32 m0, s52, {UO + 512}")
    a("s_nop 0")
    for i in range(2):
        a(f"buffer_load_dwordx4 v{t0}, s[4:7], s51 offen offset:{1024*i} lds")
    a("s_mov_b32 m0, s50")
    a("s_nop 0")
    for i in range(4):
        a(f"buffer_load_dwordx4 v{t0}, s[4:7], s48 offen offset:{1024*i} lds")
    a(f"s_add_u32 m0, s50, {CP}")
    a("s_nop 0")
    for i in range(4):
        a(f"buffer_load_dwordx4 v{t0}, s[4:7], s49 offen offset:{1024*i} lds")
    a("s_cmp_lt_u32 s14, 4")
    a(f"s_cbranch_scc1 {name}_main")
    a("s_waitcnt vmcnt(0)")
    a("s_barrier")
    a("s_endpgm")
    a.label(f"{name}_main")
    a(f"v_mov_b32 v{t2}, 0")
    a(f"v_mov_b32 v{ACC[0]}, 0")
    a(f"v_mov_b32 v{ACC[0]+1}, 0")
    a(f"v_lshlrev_b32 v{t1}, 3, v0")
    a(f"v_add_u32 v{t1}, s47, v{t1}")
    a(f"ds_write_b64 v{t1}, {vr(ACC[0],2)} offset:{UO}")
    a(f"v_lshrrev_b32 v{t1}, 4, v0")
    a(f"v_mul_u32_u24 v{t1}, {CP}, v{t1}")
    a(f"v_and_b32 v{t3}, 15, v0")
    a(f"v_lshl_add_u32 v{t1}, v{t3}, 2, v{t1}")
    a(f"v_add_u32 v{t1}, s47, v{t1}")
    a(f"ds_write_b32 v{t1}, v{t2}")
    a(f"v_bfe_u32 v{t1}, v0, 2, 2")
    a(f"v_mul_u32_u24 v{vA}, {CP}, v{t1}")
    a(f"v_and_b32 v{t2}, 3, v0")
    a(f"v_lshl_add_u32 v{vA}, v{t2}, 3, v{vA}")
    a(f"v_and_b32 v{t2}, 48, v0")
    a(f"v_sub_u32 v{vA}, v{vA}, v{t2}")
    a("s_add_u32 s53, s47, 88")
    a(f"v_add_u32 v{vA}, s53, v{vA}")
    a(f"v_lshl_add_u32 v{vB}, v{t3}, 5, v{t2}")
    a(f"s_add_u32 s53, s47, {UO + 32}")
    a(f"v_add_u32 v{vB}, s53, v{vB}")
    a(f"v_lshrrev_b32 v{t2}, 1, v{t2}")
    a(f"v_lshl_add_u32 v{vY}, v{t3}, 5, v{t2}")
    a(f"v_add_u32 v{vY}, s47, v{vY}")
    if st: st.stamp()
    a("s_waitcnt vmcnt(0) lgkmcnt(0)")
    a("s_barrier")
    if st: st.stamp()
    def reads(mu):
        L = []
        for i in range(8):
            m = mu + 8*i
            for y in range(2):
                L.append(f"ds_read_b64_tr_b16 {vr(FA[mu&1][i]+2*y,2)}, v{vA} offset:{64*m + 8*(1-y)}")
            r = 8*i - mu
            L.append(f"ds_read_b128 {vr(FB[mu&1][i],4)}, v{vB} offset:{64*(r+7)}")
        return L
    def mfmas(mu):
        L = []
        for aa in range(8):
            for t in range(aa, 8):
                c = "0" if (mu == 0 and aa == 0) else vr(ACC[t], 4)
                L.append(f"v_mfma_f32_16x16x32_bf16 {vr(ACC[t],4)}, {vr(FA[mu&1][aa],4)}, {vr(FB[mu&1][t-aa],4)}, {c}")
        return L
    for l in reads(0): a(l)
    for mu in range(8):
        a("s_waitcnt lgkmcnt(0)")
        rd = reads(mu + 1) if mu < 7 else []
        for m in mfmas(mu):
            a(m)
            if rd: a(rd.pop(0))
        assert not rd
    if st: st.stamp()
    a(f"v_bfe_u32 v{t1}, v0, 2, 2")
    a(f"v_mul_u32_u24 v{vA}, {CH_LDS}, v{t1}")
    a(f"v_and_b32 v{t2}, 3, v0")
    a(f"v_lshl_add_u32 v{vA}, v{t2}, 3, v{vA}")
    a(f"v_and_b32 v{t2}, 48, v0")
    a(f"v_lshl_add_u32 v{vA}, v{t2}, 1, v{vA}")
    a("s_lshl_b32 s53, s14, 10")
    a(f"v_add_u32 v{vA}, s53, v{vA}")
    a(f"v_mul_u32_u24 v{vB}, 2304, v0")
    a(f"s_mul_i32 s53, s14, {512*2304}")
    a("s_lshl_b32 s54, s12, 3")
    a("s_add_u32 s53, s53, s54")
    a("s_add_u32 s53, s53, 1152")
    for t in range(8):
        d = FA[0][t]
        a(f"v_cvt_pk_bf16_f32 v{d}, v{ACC[t]}, v{ACC[t]+1}")
        a(f"v_cvt_pk_bf16_f32 v{d+1}, v{ACC[t]+2}, v{ACC[t]+3}")
        a(f"ds_write_b64 v{vY}, {vr(d,2)} offset:{512*t}")
    a("s_waitcnt lgkmcnt(0)")
    a("s_barrier")
    for i in range(8):
        a(f"ds_read_b64_tr_b16 {vr(FB[0][i],2)}, v{vA} offset:{128*i}")
    for i in range(8):
        a(f"s_waitcnt lgkmcnt({7-i})")
        a(f"buffer_store_dwordx2 {vr(FB[0][i],2)}, v{vB}, s[8:11], s53 offen")
        if i < 7: a(f"s_add_u32 s53, s53, {64*2304}")
    if st:
        a("s_waitcnt vmcnt(0)")
        st.stamp(); st.real()
        st.flush(4, 14, t0, t1)
    a("s_endpgm")
    return R.n

def gen_l3(a, name="out_kernel"):
    kernel_header(a, name)
    a("s_cmp_ge_u32 s2, 240")
    a(f"s_cbranch_scc1 {name}_end")
    st = Stamps(a, kid=2) if STAMP_ON() else None
    if st: st.real(); st.stamp()
    load_kernargs(a)
    a("v_lshrrev_b32 v1, 6, v0")
    a("v_and_b32 v0, 63, v0")
    a("v_readfirstlane_b32 s14, v1")
    a("s_and_b32 s42, s2, 7")
    a("s_lshr_b32 s43, s2, 3")
    a("s_cmp_ge_u32 s43, 18")
    a(f"s_cbranch_scc1 {name}_proj")
    a("s_mul_i32 s12, s42, 18")
    a("s_add_u32 s12, s12, s43")
    a("s_waitcnt lgkmcnt(0)")
    n0 = st.n if st else 0
    nv1 = gen_conv(a, name + "_c", st)
    a.label(f"{name}_proj")
    if st: st.n = n0
    a("s_sub_u32 s43, s43, 18")
    a("s_lshl_b32 s12, s42, 1")
    a("s_and_b32 s13, s43, 1")
    a("s_add_u32 s12, s12, s13")
    a("s_lshl_b32 s12, s12, 7")
    a("s_lshr_b32 s13, s43, 1")
    a("s_mul_i32 s13, s13, 96")
    a("s_waitcnt lgkmcnt(0)")
    nv2 = k_gemm.gen_gemm(a, name + "_g", "proj", NT3, st)
    a.label(f"{name}_end")
    a("s_endpgm")
    return max(nv1, nv2), max(k_gemm.gemm_lds(NT3), 4 * CH_LDS), 240
```

```python
from asmlib import *
import struct, math
def fb(x): return struct.unpack("<I", struct.pack("<f", x))[0]
TP = 272
PREP_WAVE_LDS = 64 * TP
LOG2E = 1.4426950408889634

def gen_prep(a, name, st=None):
    R = Regs(1)
    t0, t1, t2, t3 = [R.alloc() for _ in range(4)]
    vLar, vAim, vCre, vCim, vDt, vDsk = [R.alloc() for _ in range(6)]
    vWr, vRdA, vL16 = [R.alloc() for _ in range(3)]
    vZr, vZi = R.alloc(), R.alloc()
    E1, E8, E64, E256 = [R.alloc(2) for _ in range(4)]
    G = [R.alloc(2) for _ in range(9)]
    H = [R.alloc(2) for _ in range(5)]
    Y = [[R.alloc(2) for _ in range(2)] for _ in range(4)]
    cv = [R.alloc() for _ in range(8)]
    FA = [R.alloc(4, 4) for _ in range(4)]
    FB = [R.alloc(4, 4) for _ in range(4)]
    ACC = R.alloc(16, 4)
    srd(a, 4, P_WS, WS_BYTES)
    srd(a, 8, P_U, 2048*1152)
    a("s_mul_i32 s44, s12, 9")
    a("s_add_u32 s44, s44, s14")
    a(f"s_mul_i32 s45, s14, {PREP_WAVE_LDS}")
    a("s_lshl_b32 s46, s44, 8")
    a(f"v_lshlrev_b32 v{t0}, 2, v0")
    a(f"v_add_u32 v{t0}, s46, v{t0}")
    a("s_lshl_b32 s46, s44, 1")
    a(f"v_mov_b32 v{t1}, s46")
    a(f"global_load_ushort v{vDt}, v{t1}, s[{P_LDT}:{P_LDT+1}]")
    a(f"global_load_dword v{vLar}, v{t0}, s[{P_LAR}:{P_LAR+1}]")
    a(f"global_load_dword v{vAim}, v{t0}, s[{P_AIM}:{P_AIM+1}]")
    a(f"global_load_dword v{vCre}, v{t0}, s[{P_CRE}:{P_CRE+1}]")
    a(f"global_load_dword v{vCim}, v{t0}, s[{P_CIM}:{P_CIM+1}]")
    a(f"global_load_ushort v{vDsk}, v{t1}, s[{P_DSK}:{P_DSK+1}]")
    a("s_and_b32 s47, s12, 15")
    a("s_lshl_b32 s47, s47, 7")
    a("s_lshr_b32 s48, s12, 4")
    a("s_mul_i32 s48, s48, 9")
    a("s_add_u32 s48, s48, s14")
    a("s_mul_i32 s49, s47, 1152")
    a("s_lshl_b32 s50, s48, 5")
    a("s_add_u32 s49, s49, s50")
    a(f"v_lshrrev_b32 v{t2}, 1, v0")
    a(f"v_mul_u32_u24 v{t2}, 1152, v{t2}")
    a(f"v_and_b32 v{t3}, 1, v0")
    a(f"v_lshl_add_u32 v{t2}, v{t3}, 4, v{t2}")
    for i in range(4):
        a(f"s_add_u32 m0, s45, {1024*i}")
        if i: a(f"s_add_u32 s49, s49, {32*1152}")
        else: a("s_nop 0")
        a(f"buffer_load_dwordx4 v{t2}, s[8:11], s49 offen lds")
    a(f"v_lshlrev_b32 v{vL16}, 4, v0")
    a(f"v_lshlrev_b32 v{vWr}, 2, v0")
    a(f"v_add_u32 v{vWr}, s45, v{vWr}")
    a(f"v_and_b32 v{t0}, 31, v0")
    a(f"v_mul_u32_u24 v{vRdA}, {TP}, v{t0}")
    a(f"v_lshrrev_b32 v{t0}, 5, v0")
    a(f"v_lshl_add_u32 v{vRdA}, v{t0}, 4, v{vRdA}")
    a(f"v_add_u32 v{vRdA}, s45, v{vRdA}")
    vU, vUo = cv[0], cv[1]
    a(f"v_lshrrev_b32 v{t0}, 4, v0")
    a(f"v_bfe_u32 v{t1}, v0, 2, 2")
    a(f"v_lshl_add_u32 v{t1}, v{t0}, 3, v{t1}")
    a(f"v_lshlrev_b32 v{vU}, 5, v{t1}")
    a(f"v_and_b32 v{t1}, 3, v0")
    a(f"v_lshl_add_u32 v{vU}, v{t1}, 3, v{vU}")
    a(f"v_add_u32 v{vU}, s45, v{vU}")
    a(f"v_and_b32 v{t1}, 15, v0")
    a(f"v_lshlrev_b32 v{vUo}, 12, v{t1}")
    a(f"v_lshl_add_u32 v{vUo}, v{t0}, 4, v{vUo}")
    a("s_lshl_b32 s50, s48, 16")
    a("s_lshl_b32 s51, s47, 1")
    a("s_add_u32 s50, s50, s51")
    a(f"s_add_u32 s50, s50, {WS_UT:#x}")
    a(f"s_mov_b32 s52, {fb(LOG2E):#x}")
    a(f"s_mov_b32 s53, {fb(LOG2E - struct.unpack('<f', struct.pack('<f', LOG2E))[0]):#x}")
    a(f"s_mov_b32 s54, {fb(math.log(2.0)):#x}")
    def exp_bf16(dst, x, ta, tb):
        a(f"v_mul_f32 v{ta}, s52, v{x}")
        a(f"v_exp_f32 v{dst}, v{ta}")
        a(f"v_fma_f32 v{tb}, v{x}, s52, -v{ta}")
        a(f"v_fma_f32 v{tb}, v{x}, s53, v{tb}")
        a(f"v_mul_f32 v{tb}, s54, v{tb}")
        a(f"v_fma_f32 v{dst}, v{dst}, v{tb}, v{dst}")
        a(f"v_cvt_pk_bf16_f32 v{dst}, 0, v{dst}")
    if st: st.stamp()
    a("s_waitcnt vmcnt(4)")
    if st: st.stamp()
    a(f"v_lshlrev_b32 v{vDt}, 16, v{vDt}")
    a(f"v_mov_b32 v{t3}, v{vDt}")
    exp_bf16(vDt, t3, t0, t1)
    a(f"v_and_b32 v{t0}, 0x7fff7fff, v{vCre}")
    a(f"v_and_b32 v{t1}, 0x7fff7fff, v{vCim}")
    a(f"v_pk_max_u16 v{t0}, v{t0}, v{t1}")
    a(f"v_lshlrev_b32 v{t1}, 16, v{t0}")
    a(f"v_max_u32 v{t0}, v{t0}, v{t1}")
    for dpp in ("row_shr:1 row_mask:0xf", "row_shr:2 row_mask:0xf", "row_shr:4 row_mask:0xf", "row_shr:8 row_mask:0xf",
                "row_bcast:15 row_mask:0xa", "row_bcast:31 row_mask:0xc"):
        a("s_nop 1")
        a(f"v_max_u32_dpp v{t0}, v{t0}, v{t0} {dpp} bank_mask:0xf")
    a("s_nop 1")
    a(f"v_readlane_b32 s55, v{t0}, 63")
    a("s_nop 3")
    a("s_lshr_b32 s55, s55, 23")
    a("s_max_u32 s55, s55, 1")
    a("s_min_u32 s55, s55, 252")
    a("s_sub_u32 s56, 254, s55")
    a("s_lshl_b32 s56, s56, 23")
    a("s_add_u32 s55, s55, 1")
    a("s_lshl_b32 s55, s55, 23")
    a("s_waitcnt vmcnt(0)")
    for s in range(4):
        for y in range(2):
            a(f"ds_read_b64_tr_b16 {vr(FA[s]+2*y,2)}, v{vU} offset:{1024*s + 128*y}")
    for s in range(4):
        a(f"s_waitcnt lgkmcnt({6-2*s})")
        a(f"buffer_store_dwordx4 {vr(FA[s],4)}, v{vUo}, s[4:7], s50 offen offset:{64*s}")
    def cmul(d, x, y):
        a(f"v_pk_mul_f32 {vr(d,2)}, {vr(x,2)}, {vr(y,2)} op_sel:[0,0] op_sel_hi:[0,1]")
        a(f"v_pk_fma_f32 {vr(d,2)}, {vr(x,2)}, {vr(y,2)}, {vr(d,2)} op_sel:[1,1,0] op_sel_hi:[1,0,1] neg_lo:[1,0,0]")
    cvi = [0]
    def put(src, rows, neg):
        c = cv[2 + cvi[0] % 6]; cvi[0] += 1
        a(f"v_cvt_pk_f16_f32 v{c}, v{src}, {'-' if neg else ''}v{src+1}")
        for r in rows:
            a(f"ds_write_b32 v{vWr}, v{c} offset:{r*TP}")
    rho = lambda h, r: 8*(r >> 2) + 4*h + (r & 3)
    for ps in range(2):
        a.c(f"kgen pass {ps}")
        def unpack(dst, src):
            if ps == 0: a(f"v_lshlrev_b32 v{dst}, 16, v{src}")
            else: a(f"v_and_b32 v{dst}, 0xffff0000, v{src}")
        unpack(t3, vLar)
        exp_bf16(vZr, t3, t0, t1)
        unpack(vZi, vAim)
        a(f"v_mul_f32 v{vZr}, v{vZr}, v{vDt}")
        a(f"v_mul_f32 v{vZi}, v{vZi}, v{vDt}")
        a(f"v_mul_f32 v{vZr}, {fb(-LOG2E):#x}, v{vZr}")
        a(f"v_mul_f32 v{vZi}, 0.15915494, v{vZi}")
        unpack(G[0], vCre); unpack(G[0]+1, vCim)
        a(f"v_mul_f32 v{G[0]}, s56, v{G[0]}")
        a(f"v_mul_f32 v{G[0]+1}, s56, v{G[0]+1}")
        for (E, p) in ((E1, 1.0), (E8, 8.0), (E64, 64.0), (E256, 256.0)):
            a(f"v_mul_f32 v{t0}, {fb(p):#x}, v{vZi}")
            a(f"v_mul_f32 v{t1}, {fb(p):#x}, v{vZr}")
            a(f"v_fract_f32 v{t0}, v{t0}")
            a(f"v_exp_f32 v{t1}, v{t1}")
            a(f"v_cos_f32 v{E}, v{t0}")
            a(f"v_sin_f32 v{E+1}, v{t0}")
            a(f"v_mul_f32 v{E}, v{E}, v{t1}")
            a(f"v_mul_f32 v{E+1}, v{E+1}, v{t1}")
        a(f"v_mov_b32 v{cv[2]}, 0x3c00")
        a(f"ds_write_b32 v{vWr}, v{cv[2]} offset:{32*TP}")
        cvi[0] = 1
        cmul(Y[2][0], E64, E64)
        put(E8, [33], False)
        put(E64, [40], False)
        cmul(Y[3][0], Y[2][0], E64)
        put(Y[2][0], [48], False)
        put(G[0], [rho(0, 0)], True)
        put(Y[3][0], [56], False)
        cur = [E8, E64, Y[2][0], Y[3][0]]
        pos = [1, 0, 0, 0]
        flip = [0, 0, 1, 1]
        for step in range(8):
            outs = []
            for c in range(4):
                if pos[c] < 7:
                    d = Y[c][flip[c]]; flip[c] ^= 1
                    cmul(d, cur[c], E8); cur[c] = d; pos[c] += 1
                    outs.append((d, [32 + 8*c + pos[c]], False))
            cmul(G[step+1], G[step], E1)
            if step + 1 < 8: outs.append((G[step+1], [rho(0, step+1)], True))
            for o in outs: put(*o)
        b1rows = {0: [rho(1,0), rho(1,1)], 1: [rho(1,2)], 2: [rho(1,3), rho(1,4), rho(1,5)], 3: [rho(1,6)], 4: [rho(1,7)]}
        for i in range(5): cmul(H[i], G[2*i], E256)
        for i in range(5): put(H[i], b1rows[i], True)
        for i in range(3): cmul(G[i], H[2*i], E256)
        for i in range(3): put(G[i], [rho(0, 8+i)], True)
        for i in range(3): cmul(H[i], G[i], E256)
        for i in range(3): put(H[i], [rho(1, 8+i)], True)
        src = [H[0], H[2]]
        dsts = [[G[0], G[1]], [G[2], G[3]]]
        for B in range(4, 8):
            d = dsts[B & 1]
            for i in range(2): cmul(d[i], src[i], E256)
            h, r0 = B & 1, 12 + 2*((B - 4) >> 1)
            for i in range(2): put(d[i], [rho(h, r0+i)], True)
            src = d
        a("s_waitcnt lgkmcnt(0)")
        if st and ps == 0: st.stamp()
        for half in range(2):
            for i in range(4):
                ks = 4*half + i
                a(f"ds_read_b128 {vr(FA[i],4)}, v{vRdA} offset:{32*ks}")
                a(f"ds_read_b128 {vr(FB[i],4)}, v{vRdA} offset:{32*TP + 32*ks}")
            for i in range(4):
                a(f"s_waitcnt lgkmcnt({6-2*i})")
                c = "0" if (ps == 0 and half == 0 and i == 0) else vr(ACC, 16)
                a(f"v_mfma_f32_32x32x16_f16 {vr(ACC,16)}, {vr(FA[i],4)}, {vr(FB[i],4)}, {c}")
    if st: st.stamp()
    a(f"v_mul_f32 v{vDt}, s55, v{vDt}")
    a(f"v_lshlrev_b32 v{vDsk}, 16, v{vDsk}")
    a("v_cmp_eq_u32 vcc, 0, v0")
    a(f"v_and_b32 v{t0}, 1, v0")
    a(f"s_mul_i32 s46, s44, {KP}")
    a(f"v_cndmask_b32 v{vDsk}, 0, v{vDsk}, vcc")
    a(f"v_cmp_eq_u32 vcc, 1, v{t0}")
    a(f"s_add_u32 s46, s46, {WS_KEXP + 128:#x}")
    a("s_sub_u32 s47, s46, 16")
    for i in range(4): a(f"v_mov_b32 v{FB[0]+i}, 0")
    a("s_nop 3")
    a(f"v_fma_f32 v{ACC}, v{ACC}, v{vDt}, v{vDsk}")
    for i in range(1, 16):
        if i != 11: a(f"v_mul_f32 v{ACC+i}, v{ACC+i}, v{vDt}")
    pk = lambda d, x, y: a(f"v_cvt_pk_bf16_f32 v{d}, v{x}, v{y}")
    for i in range(4): pk(FA[0]+i, ACC+2*i, ACC+2*i+1)
    a(f"buffer_store_dwordx4 {vr(FA[0],4)}, v{vL16}, s[4:7], s46 offen")
    pk(FA[1], ACC+8, ACC+8); pk(FA[1]+1, ACC+8, ACC+9); pk(FA[1]+2, ACC+9, ACC+9); pk(FA[1]+3, ACC+10, ACC+10)
    a(f"buffer_store_dwordx4 {vr(FA[1],4)}, v{vL16}, s[4:7], s46 offen offset:1024")
    for sl in range(2):
        x, y = ACC + 12 + 2*sl, ACC + 13 + 2*sl
        d = FA[2+sl]
        a(f"v_cndmask_b32 v{t0}, v{x}, v{y}, vcc")
        pk(d, x, x); pk(d+1, x, x); pk(d+2, t0, y); pk(d+3, y, y)
        a(f"buffer_store_dwordx4 {vr(d,4)}, v{vL16}, s[4:7], s46 offen offset:{2048 + 1024*sl}")
    a("s_mov_b64 exec, 1")
    a(f"buffer_store_dwordx4 {vr(FB[0],4)}, v{vL16}, s[4:7], s47 offen")
    if st:
        a("s_waitcnt vmcnt(0)")
        st.stamp(); st.real()
        st.flush(4, 14, t0, t1)
    a("s_endpgm")
    return R.n
```

```python
import sys
from asmlib import *
import k_attn, k_gemm, k_prep

HEADER = open("concat_heads__mha_block__ssm_conv_s4d__prompt.s.ref").read().split("; Override launch")[0]

def gen_l1(a, name="qkv_kernel"):
    kernel_header(a, name)
    a("s_cmp_ge_u32 s2, 256")
    a(f"s_cbranch_scc1 {name}_end")
    st = Stamps(a, kid=0) if STAMP_ON() else None
    if st: st.real(); st.stamp()
    load_kernargs(a)
    a("v_lshrrev_b32 v1, 6, v0")
    a("v_and_b32 v0, 63, v0")
    a("v_readfirstlane_b32 s14, v1")
    a("s_and_b32 s42, s2, 7")
    a("s_lshr_b32 s43, s2, 3")
    a("s_cmp_ge_u32 s43, 24")
    a(f"s_cbranch_scc1 {name}_prep")
    a("s_cmp_ge_u32 s14, 8")
    a(f"s_cbranch_scc1 {name}_end")
    a("s_and_b32 s12, s42, 3")
    a("s_lshl_b32 s12, s12, 2")
    a("s_and_b32 s13, s43, 3")
    a("s_add_u32 s12, s12, s13")
    a("s_lshl_b32 s12, s12, 7")
    a("s_lshr_b32 s13, s42, 2")
    a("s_mul_i32 s13, s13, 6")
    a("s_lshr_b32 s43, s43, 2")
    a("s_add_u32 s13, s13, s43")
    a("s_mul_i32 s13, s13, 144")
    a("s_waitcnt lgkmcnt(0)")
    n0 = st.n if st else 0
    nv1 = k_gemm.gen_gemm(a, name + "_g", "qkv", 9, st)
    a.label(f"{name}_prep")
    if st: st.n = n0
    a("s_sub_u32 s12, s2, 192")
    a("s_waitcnt lgkmcnt(0)")
    nv2 = k_prep.gen_prep(a, name + "_p", st)
    a.label(f"{name}_end")
    a("s_endpgm")
    return max(nv1, nv2), max(k_gemm.gemm_lds(9), 9 * k_prep.PREP_WAVE_LDS)

def build(which, out):
    a = Asm()
    launches = []
    descs = []
    a.raw('.amdgcn_target "amdgcn-amd-amdhsa--gfx950"')
    a.raw(".text")
    for k in which:
        if k == "attn":
            nv = k_attn.gen_attn(a)
            launches.append(f"; @launch kernel=attn_kernel grid=(256,1,1) block=(512,1,1) lds={k_attn.ATTN_LDS}")
            descs.append(kernel_desc("attn_kernel", nv))
        if k == "l1":
            nv, lds = gen_l1(a)
            print("l1 vgprs", nv, "lds", lds, file=sys.stderr)
            launches.append(f"; @launch kernel=qkv_kernel grid=(256,1,1) block=(576,1,1) lds={lds}")
            descs.append(kernel_desc("qkv_kernel", nv))
        if k == "l3":
            import k_l3
            nv, lds, grid = k_l3.gen_l3(a)
            print("l3 vgprs", nv, "lds", lds, file=sys.stderr)
            launches.append(f"; @launch kernel=out_kernel grid=({grid},1,1) block=(512,1,1) lds={lds}")
            descs.append(kernel_desc("out_kernel", nv))
    txt = HEADER + "\n".join(launches) + "\n" + a.text() + '.section .rodata,"a"\n' + "".join(descs)
    open(out, "w").write(txt)

if __name__ == "__main__":
    build(sys.argv[2].split(","), sys.argv[1])
```

```python
from fcommon import *
CHK = 38400
PK, PV = 1088, 1040
VO, KO = 32, 18816
QB = 4 * CHK
ONES = QB + 8 * 1152
LDS_TOTAL = ONES + 1024
OOB = 0x30000
assert LDS_TOTAL == 163840

VA = 176
vKa, vEa, vVa, vIdx, vD, vEi, vVi, vQa, vQe = [VA + i for i in range(9)]
vO = 192

def head_ids(a):
    a("s_and_b32 s44, s2, 7")
    a("s_lshl_b32 s44, s44, 2")
    a("s_bfe_u32 s45, s2, 0x20003")
    a("s_add_u32 s44, s44, s45")
    a("s_lshr_b32 s45, s2, 5")
    a("s_mul_i32 s46, s44, 0x12000")
    a(f"s_add_u32 s47, s46, {576*4096:#x}")
    a(f"s_add_u32 s48, s46, {1152*4096:#x}")

def attn_hoist(a, vt0, vt1, vt2, vt3):
    vlane, w = 0, S_WAVE
    a(f"v_lshlrev_b32 v{vD}, 4, v0")
    a(f"v_lshrrev_b32 v{vt3}, 5, v{vlane}")
    a(f"v_bfe_u32 v{vt0}, v{vlane}, 2, 2")
    a(f"v_and_b32 v{vt1}, 3, v{vlane}")
    a(f"v_lshlrev_b32 v{vt1}, 3, v{vt1}")
    a(f"v_and_b32 v{vt2}, 16, v{vlane}")
    a(f"v_lshl_add_u32 v{vt1}, v{vt2}, 1, v{vt1}")
    a(f"v_lshl_add_u32 v{vt2}, v{vt3}, 3, v{vt0}")
    a(f"v_mul_u32_u24 v{vKa}, {PK}, v{vt2}")
    a(f"v_add_u32 v{vKa}, v{vKa}, v{vt1}")
    a(f"v_add_u32 v{vKa}, {KO}, v{vKa}")
    a(f"s_mul_i32 s56, s{w}, 1152")
    a(f"s_add_u32 s56, s56, {QB}")
    a(f"v_lshl_add_u32 v{vQa}, v{vt2}, 6, v{vt1}")
    a(f"v_add_u32 v{vQa}, s56, v{vQa}")
    a(f"v_and_b32 v{vQe}, 1, v{vt0}")
    a(f"v_lshl_add_u32 v{vQe}, v{vQe}, 6, v{vt1}")
    a(f"v_add_u32 v{vQe}, s56, v{vQe}")
    a(f"v_mul_u32_u24 v{vEa}, {PK}, v{vt0}")
    a(f"v_add_u32 v{vEa}, {KO + 16*PK}, v{vEa}")
    a(f"v_cmp_lt_u32 vcc, 1, v{vt0}")
    a(f"v_mov_b32 v{vt2}, {ONES}")
    a(f"v_mov_b32 v{vEi}, {CHK}")
    a(f"v_lshl_add_u32 v{vt1}, v{vt3}, 6, v{vt1}")
    a(f"v_cndmask_b32 v{vEa}, v{vEa}, v{vt2}, vcc")
    a(f"v_cndmask_b32 v{vEi}, v{vEi}, 0, vcc")
    a(f"v_add_u32 v{vEa}, v{vEa}, v{vt1}")
    a(f"v_and_b32 v{vt0}, 31, v{vlane}")
    a(f"v_and_b32 v{vt1}, 0x13, v{vt0}")
    a(f"v_and_b32 v{vVi}, 4, v{vt0}")
    a(f"v_lshl_add_u32 v{vt1}, v{vVi}, 1, v{vt1}")
    a(f"v_and_b32 v{vVi}, 8, v{vt0}")
    a(f"v_lshrrev_b32 v{vVi}, 1, v{vVi}")
    a(f"v_add_u32 v{vt1}, v{vt1}, v{vVi}")
    a(f"v_cmp_eq_u32 vcc, 18, v{vt0}")
    a(f"v_mul_u32_u24 v{vVa}, {PV}, v{vt1}")
    a(f"v_add_u32 v{vVa}, {VO}, v{vVa}")
    a(f"v_mov_b32 v{vVi}, {CHK}")
    a(f"v_cndmask_b32 v{vVa}, v{vVa}, v{vt2}, vcc")
    a(f"v_cndmask_b32 v{vVi}, v{vVi}, 0, vcc")
    a(f"v_cmp_lt_u32 vcc, 18, v{vt0}")
    a(f"v_lshl_add_u32 v{vVa}, v{vt3}, 4, v{vVa}")
    a(f"v_mov_b32 v{vt2}, {OOB}")
    a(f"v_cndmask_b32 v{vVa}, v{vVa}, v{vt2}, vcc")
    a(f"v_mov_b32 v{vIdx}, 0xdddddddd")
    for i in range(16):
        a(f"v_mov_b32 v{vO+i}, 0")

def gen_preload(a, st):
    R = Regs(V0)
    t0, t1, t2, t3 = [R.alloc() for _ in range(4)]
    vQs = R.alloc()
    o = R.alloc(2)
    head_ids(a)
    a(f"s_mov_b32 s49, s{S_WAVE}")
    a(f"v_lshrrev_b32 v{vQs}, 2, v0")
    a(f"v_lshlrev_b32 v{vQs}, 12, v{vQs}")
    a(f"v_and_b32 v{t1}, 3, v0")
    a(f"v_lshl_add_u32 v{vQs}, v{t1}, 4, v{vQs}")
    a(f"v_mov_b32 v{o}, 0x3f803f80")
    a("s_lshl_b32 s50, s49, 8")
    a(f"s_add_u32 s50, s50, {ONES}")
    a(f"v_lshlrev_b32 v{t0}, 2, v0")
    a(f"v_add_u32 v{t0}, s50, v{t0}")
    a(f"ds_write_b32 v{t0}, v{o}")
    a(f"v_mov_b32 v{t3}, {FLAG}")
    a(f"s_cmp_lg_u32 s{S_WAVE}, 3")
    a("s_cbranch_scc1 L_pre_spin")
    a(f"v_lshrrev_b32 v{t0}, 1, v0")
    a(f"v_mul_u32_u24 v{t0}, 576, v{t0}")
    a(f"v_and_b32 v{t1}, 1, v0")
    a(f"v_mul_u32_u24 v{t1}, 17, v{t1}")
    a("s_mul_i32 s50, s44, 18")
    a(f"v_add3_u32 v{t0}, v{t0}, v{t1}, s50")
    a(f"v_and_b32 v{t0}, 0xffffff80, v{t0}")
    a(f"s_mov_b32 s50, {CNT_Q + RDY:#x}")
    if env("QDELAY", 0): a(f"s_sleep {env('QDELAY', 0)}")
    poll(a, SRD_WS, "s50", 1, t2, sleep=env("QSLEEP", 4), vaddr=t0, lanes=6)
    a(f"ds_write_b32 v{t3}, v{o} offset:4")
    a("s_branch L_pre_go")
    a.label("L_pre_spin")
    a("s_sleep 2")
    a(f"ds_read_b32 v{t2}, v{t3} offset:4")
    a("s_waitcnt lgkmcnt(0)")
    a(f"v_cmp_eq_u32 vcc, 0, v{t2}")
    a("s_cbranch_vccnz L_pre_spin")
    a.label("L_pre_go")
    lds_wait(a, 8, "s59", t3, t2)
    st.stamp(9)
    W = f"s[{SRD_WS}:{SRD_WS+3}]"
    a("s_lshl_b32 s50, s49, 12")
    a("s_add_u32 s51, s47, s50")
    a(f"s_mul_i32 s52, s49, {PK}")
    for j in range(4):
        a(f"s_add_u32 m0, s52, {KO + 4*j*PK}")
        if j: a("s_add_u32 s51, s51, 0x4000")
        else: a("s_nop 0")
        a(f"buffer_load_dwordx4 v{vD}, {W}, s51 offen {LD} lds")
    a("s_and_b32 s53, s49, 1")
    a("s_bitcmp1_b32 s49, 1")
    a("s_cselect_b32 s51, s48, s47")
    a(f"s_mov_b32 s54, {KO + 16*PK}")
    a(f"s_mov_b32 s55, {PK}")
    a(f"s_cselect_b32 s54, {VO + 16*PV}, s54")
    a(f"s_cselect_b32 s55, {PV}, s55")
    a("s_mul_i32 s55, s55, s53")
    a("s_add_u32 s54, s54, s55")
    a("s_lshl_b32 s53, s53, 12")
    a("s_add_u32 s51, s51, s53")
    a("s_mov_b32 m0, s54")
    a("s_add_u32 s51, s51, 0x10000")
    a(f"buffer_load_dwordx4 v{vD}, {W}, s51 offen {LD} lds")
    a("s_lshl_b32 s53, s45, 9")
    a("s_add_u32 s53, s53, s46")
    a("s_lshl_b32 s55, s49, 7")
    a("s_add_u32 s53, s53, s55")
    a("s_mul_i32 s55, s49, 2304")
    for j in range(2):
        a(f"s_add_u32 m0, s55, {QB + 1152*j}")
        a(f"s_add_u32 s56, s53, {64*j}")
        a(f"buffer_load_dwordx4 v{vQs}, {W}, s56 offen {LD} lds")
    a("s_mov_b64 exec, 0xff")
    for j in range(2):
        a(f"s_add_u32 m0, s55, {QB + 1152*j + 1024}")
        a(f"s_add_u32 s56, s53, {64*j + 0x10000}")
        a(f"buffer_load_dwordx4 v{vQs}, {W}, s56 offen {LD} lds")
    a("s_mov_b64 exec, -1")
    a("s_add_u32 s56, s48, s50")
    a(f"s_mul_i32 s52, s49, {PV}")
    for j in range(4):
        a(f"s_add_u32 m0, s52, {VO + 4*j*PV}")
        if j: a("s_add_u32 s56, s56, 0x4000")
        else: a("s_nop 0")
        a(f"buffer_load_dwordx4 v{vD}, {W}, s56 offen {LD} lds")
    a(f"s_add_u32 m0, s54, {CHK}")
    a("s_add_u32 s51, s51, 1024")
    a(f"buffer_load_dwordx4 v{vD}, {W}, s51 offen {LD} lds")
    return R.n

def gen_attn(a, st):
    prio_n, bar_lo, bar_hi = env("PRIO_N", 46), env("BAR_LO", 5), env("BAR_HI", 12)
    W = f"s[{SRD_WS}:{SRD_WS+3}]"
    R = Regs(V0)
    vt0, vt1, vt2, vt3 = [R.alloc() for _ in range(4)]
    vQ = R.alloc(4, 4)
    vQA = R.alloc(2); vQB = R.alloc(2)
    vKM = [R.alloc(4, 4) for _ in range(2)]
    vKE = [R.alloc(2) for _ in range(2)]
    vV0 = [R.alloc(4, 4) for _ in range(2)]
    vV1 = [R.alloc(4, 4) for _ in range(2)]
    vS = [R.alloc(16, 4) for _ in range(4)]
    vlane = 0
    w = S_WAVE
    head_ids(a)
    a(f"s_lshl_b32 s49, s{w}, 12")
    a("s_add_u32 s50, s47, s49")
    a("s_add_u32 s51, s48, s49")
    a(f"s_mul_i32 s52, s{w}, {PK}")
    a(f"s_mul_i32 s53, s{w}, {PV}")
    a(f"s_and_b32 s56, s{w}, 1")
    a(f"s_bitcmp1_b32 s{w}, 1")
    a("s_cselect_b32 s54, s48, s47")
    a(f"s_mov_b32 s55, {KO + 16*PK + 2*CHK}")
    a(f"s_mov_b32 s57, {PK}")
    a(f"s_cselect_b32 s55, {VO + 16*PV + 2*CHK}, s55")
    a(f"s_cselect_b32 s57, {PV}, s57")
    a("s_mul_i32 s57, s57, s56")
    a("s_add_u32 s55, s55, s57")
    a("s_lshl_b32 s56, s56, 12")
    a("s_add_u32 s54, s54, s56")
    a(f"s_lshr_b32 s56, s{w}, 2")
    a(f"s_mul_i32 s57, s56, {CHK}")
    a("s_add_u32 s55, s55, s57")
    a("s_lshl_b32 s56, s56, 10")
    a("s_add_u32 s54, s54, s56")
    a(f"s_add_u32 s54, s54, {0x10000 + 2048}")
    later = []
    for c in (1, 2, 3):
        if c == 2: later.append((55, 0, 54, 0))
        for hi in range(2):
            later.append((52, KO + c*CHK + 8*hi*PK, 50, 1024*c + 0x8000*hi))
            later.append((53, VO + c*CHK + 8*hi*PV, 51, 1024*c + 0x8000*hi))
    def dma(mb, mo, sb, so):
        a(f"s_add_u32 m0, s{mb}, {mo}")
        a(f"s_add_u32 s58, s{sb}, {so}")
        a(f"buffer_load_dwordx4 v{vD}, {W}, s58 offen {LD} lds")
    a(f"v_cmp_gt_u32 s[42:43], 32, v{vlane}")
    a(f"s_cmp_lt_u32 s{w}, 4")
    a("s_cbranch_scc1 L_a_old")
    a("s_setprio 1")
    a("s_branch L_a_go")
    a.label("L_a_old")
    a("s_waitcnt vmcnt(0)")
    a.label("L_a_go")
    a("s_waitcnt lgkmcnt(0)")
    st.stamp(10)
    a("s_barrier")
    st.stamp(11)
    st.mark('attn')

    def ldK(t):
        if t and t % 16 == 0: a(f"v_add_u32 v{vKa}, {CHK}, v{vKa}")
        r = vKM[t & 1]
        a(f"ds_read_b64_tr_b16 {vr(r,2)}, v{vKa} offset:{64*(t&15)}")
        a(f"ds_read_b64_tr_b16 {vr(r+2,2)}, v{vKa} offset:{4*PK + 64*(t&15)}")
    def ldE(p):
        if p and p % 8 == 0: a(f"v_add_u32 v{vEa}, v{vEa}, v{vEi}")
        a(f"ds_read_b64_tr_b16 {vr(vKE[p&1],2)}, v{vEa} offset:{128*(p&7)}")
    def ldV(t):
        if t and t % 16 == 0: a(f"v_add_u32 v{vVa}, v{vVa}, v{vVi}")
        a(f"ds_read_b128 {vr(vV1[t&1],4)}, v{vVa} offset:{64*(t&15)+32}")
        a(f"ds_read_b128 {vr(vV0[t&1],4)}, v{vVa} offset:{64*(t&15)}")
    def QKe(t, S=None):
        S = vS[t & 3] if S is None else S
        q = vQB if t & 1 else vQA
        a(f"v_mfma_f32_32x32x8_bf16 {vr(S,16)}, {vr(vKE[(t>>1)&1],2)}, {vr(q,2)}, 0")
    def QKm(t, S=None):
        S = vS[t & 3] if S is None else S
        a(f"v_mfma_f32_32x32x16_bf16 {vr(S,16)}, {vr(vKM[t&1],4)}, {vr(vQ,4)}, {vr(S,16)}")
    def PV1(t): a(f"v_smfmac_f32_32x32x32_bf16 {vr(vO,16)}, {vr(vV0[t&1],4)}, {vr(vS[t&3],8)}, v{vIdx}")
    def PV2(t): a(f"v_smfmac_f32_32x32x32_bf16 {vr(vO,16)}, {vr(vV1[t&1],4)}, {vr(vS[t&3]+8,8)}, v{vIdx}")
    def EXP(t, lo, hi):
        for i in range(lo, hi):
            a(f"v_exp_f32 v{vS[t&3]+i}, v{vS[t&3]+i}")
    def maxtree(dst, S, n, first):
        i = 0
        if first:
            a(f"v_max3_f32 v{dst}, v{S}, v{S+1}, v{S+2}"); i = 3
        while i + 1 < n:
            a(f"v_max3_f32 v{dst}, v{dst}, v{S+i}, v{S+i+1}"); i += 2
        if i < n:
            a(f"v_max_f32 v{dst}, v{dst}, v{S+i}")
    def xhalf_max(m, tmp):
        a(f"v_mov_b32 v{tmp}, v{m}")
        a("s_nop 1")
        a(f"v_permlane32_swap_b32 v{m}, v{tmp}")
        a("s_nop 1")
        a(f"v_max_f32 v{m}, v{m}, v{tmp}")

    a.c("first tile: shift estimate = max over keys 0..31")
    a(f"ds_read_b64_tr_b16 {vr(vQA,2)}, v{vQe} offset:1024")
    a(f"ds_read_b64_tr_b16 {vr(vQ,2)}, v{vQa}")
    a(f"ds_read_b64_tr_b16 {vr(vQ+2,2)}, v{vQa} offset:256")
    ldE(0); ldK(0); ldK(1); ldE(1); ldV(0)
    a("s_waitcnt lgkmcnt(10)")
    a(f"v_cndmask_b32 v{vQB}, v{vQA}, 0, s[42:43]")
    a(f"v_cndmask_b32 v{vQA}, 0, v{vQA}, s[42:43]")
    a(f"v_mov_b32 v{vQA+1}, 0")
    a(f"v_mov_b32 v{vQB+1}, 0")
    a("s_waitcnt lgkmcnt(5)")
    QKe(0, vS[2]); QKm(0, vS[2])
    for _ in range(4): dma(*later.pop(0))
    maxtree(vt0, vS[2], 16, True)
    xhalf_max(vt0, vt1)
    a(f"v_cvt_pk_bf16_f32 v{vt0}, -v{vt0}, 0")
    a(f"v_cndmask_b32 v{vQA+1}, 0, v{vt0}, s[42:43]")
    a(f"v_cndmask_b32 v{vQB+1}, v{vt0}, 0, s[42:43]")
    a("s_waitcnt lgkmcnt(0)")
    QKe(0); QKm(0)
    ldK(2)
    QKe(1); QKm(1)
    for _ in range(3): dma(*later.pop(0))
    NT = 64
    for t in range(NT):
        a.c(f"tile {t}")
        if t in (bar_lo, bar_hi):
            assert not later
            a(f"s_cmp_lt_u32 s{w}, 4")
            a(f"s_cbranch_scc{0 if t == bar_lo else 1} L_a_nobar{t}")
            a("s_waitcnt vmcnt(0)")
            a("s_barrier")
            if t == bar_lo:
                a(f"s_cmp_lg_u32 s{w}, 0")
                a(f"s_cbranch_scc1 L_a_nobar{t}")
                a(f"s_mov_b32 s58, {CNT_Y:#x}")
                arrive(a, SRD_WS, "s58")
            a.label(f"L_a_nobar{t}")
        if t == bar_lo + 12:
            a(f"s_cmp_lg_u32 s{w}, 0")
            a("s_cbranch_scc1 L_a_noy")
            a(f"s_mov_b32 s58, {CNT_Y + RDY:#x}")
            arrive_finish(a, SRD_WS, "s58", 256)
            a.label("L_a_noy")
        if t == prio_n:
            a("s_setprio 0")
        a("s_waitcnt lgkmcnt(0)")
        EXP(t, 0, 2)
        if t > 0: PV2(t-1)
        if t + 1 < NT: ldV(t+1)
        EXP(t, 2, 6)
        if t + 2 < NT: QKe(t+2)
        if t + 3 < NT: ldK(t+3)
        if later: dma(*later.pop(0))
        EXP(t, 6, 10)
        if t + 2 < NT: QKm(t+2)
        if (t & 1) and (t + 3) < NT: ldE((t+3)//2)
        if later: dma(*later.pop(0))
        EXP(t, 10, 14)
        PV1(t)
        EXP(t, 14, 16)
    a("s_nop 1")
    PV2(NT-1)
    a("s_lshl_b32 s49, s45, 8")
    a(f"s_lshl_b32 s50, s{w}, 5")
    a("s_add_u32 s49, s49, s50")
    a("s_lshl_b32 s50, s44, 16")
    a("s_lshl_b32 s51, s49, 4")
    a("s_add_u32 s50, s50, s51")
    a(f"s_add_u32 s50, s50, {WS_O8:#x}")
    a("s_lshl_b32 s51, s44, 13")
    a("s_lshl_b32 s52, s49, 2")
    a("s_add_u32 s51, s51, s52")
    a(f"s_add_u32 s51, s51, {WS_OEXT:#x}")
    a("s_mov_b32 s52, 0x2b800000")
    a("s_mov_b32 s53, 0x5d800000")
    st.stamp(12)
    vL = vt2
    def bcast_l():
        a(f"v_mov_b32 v{vL}, v{vO+10}")
        a(f"v_mov_b32 v{vt3}, v{vO+10}")
        a("s_nop 1")
        a(f"v_permlane32_swap_b32 v{vL}, v{vt3}")
        a("s_nop 1")
    a.c("safety check of the shift estimate")
    bcast_l()
    a(f"v_mov_b32 v{vt0}, v{vL}")
    for i in range(10):
        a(f"v_fma_f32 v{vt0}, v{vO+i}, 0, v{vt0}")
    a(f"v_cmp_nle_f32 s[54:55], s52, v{vt0}")
    a(f"v_cmp_nge_f32 vcc, s53, v{vt0}")
    a("s_or_b64 vcc, vcc, s[54:55]")
    a("s_cbranch_vccnz L_a_fallback")
    a.label("L_a_store")
    a(f"v_rcp_f32 v{vt0}, v{vL}")
    a(f"v_and_b32 v{vt1}, 31, v0")
    for i in range(10):
        a(f"v_mul_f32 v{vO+i}, v{vO+i}, v{vt0}")
    a(f"v_lshrrev_b32 v{vt3}, 5, v0")
    a(f"v_lshlrev_b32 v{vt3}, 15, v{vt3}")
    a(f"v_lshl_add_u32 v{vt3}, v{vt1}, 4, v{vt3}")
    a(f"v_lshlrev_b32 v{vt1}, 2, v{vt1}")
    for j in range(4):
        a(f"v_cvt_pk_bf16_f32 v{vQ+j}, v{vO+2*j}, v{vO+2*j+1}")
    a(f"v_cvt_pk_bf16_f32 v{vt0}, v{vO+8}, v{vO+9}")
    a(f"buffer_store_dwordx4 {vr(vQ,4)}, v{vt3}, {W}, s50 offen sc1")
    a("s_mov_b64 exec, s[42:43]")
    a(f"buffer_store_dword v{vt0}, v{vt1}, {W}, s51 offen sc1")
    a("s_mov_b64 exec, -1")

    def fallback():
        a.label("L_a_fallback")
        a.c("exact path: true row max, then a second sweep")
        a(f"v_mov_b32 v{vQA+1}, 0")
        a(f"v_mov_b32 v{vQB+1}, 0")
        a(f"v_mov_b32 v{vt0}, 0xff800000")
        def rewind(n):
            a(f"v_subrev_u32 v{vKa}, {n*CHK}, v{vKa}")
            for _ in range(n):
                a(f"v_sub_u32 v{vEa}, v{vEa}, v{vEi}")
                a(f"v_sub_u32 v{vVa}, v{vVa}, v{vVi}")
        rewind(3)
        for ps in range(2):
            a("s_mov_b32 s56, 0")
            a.label(f"L_a_fb{ps}")
            ldE(0); ldK(0); ldK(1)
            if ps:
                ldV(0); ldV(1)
            a("s_waitcnt lgkmcnt(0)")
            QKe(0); QKm(0); QKe(1); QKm(1)
            a("s_nop 15")
            for r in (vKa, vEa, vVa):
                a(f"v_add_u32 v{r}, 128, v{r}")
            a("s_add_u32 s56, s56, 1")
            a("s_and_b32 s57, s56, 7")
            a(f"s_cbranch_scc1 L_a_fb{ps}_same")
            a(f"v_add_u32 v{vKa}, {CHK - 1024}, v{vKa}")
            for r, inc in ((vEa, vEi), (vVa, vVi)):
                a(f"v_add_u32 v{r}, v{r}, v{inc}")
                a(f"v_subrev_u32 v{r}, 1024, v{r}")
            a.label(f"L_a_fb{ps}_same")
            if ps == 0:
                maxtree(vt0, vS[0], 16, False)
                maxtree(vt0, vS[1], 16, False)
            else:
                for t in range(2):
                    for i in range(16):
                        a(f"v_sub_f32 v{vS[t]+i}, v{vS[t]+i}, v{vt0}")
                    EXP(t, 0, 16)
                a("s_nop 1")
                PV1(0); PV2(0); PV1(1); PV2(1)
            a("s_cmp_lt_u32 s56, 32")
            a(f"s_cbranch_scc1 L_a_fb{ps}")
            if ps == 0:
                xhalf_max(vt0, vt1)
                rewind(4)
                for i in range(16):
                    a(f"v_mov_b32 v{vO+i}, 0")
        a("s_nop 15")
        bcast_l()
        a("s_branch L_a_store")
    return max(R.n, 213), fallback
```

```python
from fcommon import *
import f_ssm, f_attn
SLOT = 32768
NS = 4

def gen_qkv(a, st):
    AH = env("AH", 2)
    a("s_and_b32 s44, s42, 3")
    a("s_lshl_b32 s44, s44, 2")
    a("s_and_b32 s45, s43, 3")
    a("s_add_u32 s44, s44, s45")
    a("s_lshl_b32 s44, s44, 7")
    a("s_lshr_b32 s45, s42, 2")
    a("s_mul_i32 s45, s45, 7")
    a("s_lshr_b32 s46, s43, 2")
    a("s_add_u32 s45, s45, s46")
    a("s_lshl_b32 s45, s45, 7")
    srd(a, SRD_A, P_X, 2048*1152); srd(a, SRD_B, P_WQKV, 576*3456)
    a(f"s_cmp_lt_u32 s{S_WAVE}, 4")
    a("s_cbranch_scc1 L_g_compute")
    R = Regs(V0)
    t0, t1, t2, t3 = [R.alloc() for _ in range(4)]
    vX = [R.alloc() for _ in range(2)]
    vW = [R.alloc() for _ in range(2)]
    a(f"s_sub_u32 s46, s{S_WAVE}, 4")
    a(f"v_lshrrev_b32 v{t0}, 3, v0")
    a(f"v_and_b32 v{t1}, 7, v0")
    a(f"v_lshrrev_b32 v{t2}, 4, v0")
    a(f"v_xor_b32 v{t3}, v{t2}, v{t1}")
    a(f"v_mul_u32_u24 v{vX[0]}, {8*1152}, v{t0}")
    a(f"v_lshl_add_u32 v{vX[0]}, v{t3}, 4, v{vX[0]}")
    a(f"v_xor_b32 v{vX[1]}, 64, v{vX[0]}")
    a(f"v_add_u32 v{vX[1]}, {64*1152}, v{vX[1]}")
    a("s_lshl_b32 s47, s46, 1")
    a("s_add_u32 s47, s47, s44")
    a("s_mul_i32 s47, s47, 1152")
    a(f"v_and_b32 v{t1}, 15, v0")
    a(f"v_lshlrev_b32 v{t3}, 1, v{t2}")
    a(f"v_xor_b32 v{t3}, v{t3}, v{t1}")
    a(f"v_mul_u32_u24 v{vW[0]}, 3456, v{t2}")
    a(f"v_lshl_add_u32 v{vW[0]}, v{t3}, 4, v{vW[0]}")
    a(f"v_xor_b32 v{t3}, 8, v{t3}")
    a(f"v_mul_u32_u24 v{vW[1]}, 3456, v{t2}")
    a(f"v_lshl_add_u32 v{vW[1]}, v{t3}, 4, v{vW[1]}")
    a("s_lshr_b32 s48, s46, 1")
    a("s_lshl_b32 s48, s48, 5")
    a("s_and_b32 s49, s46, 1")
    a("s_lshl_b32 s49, s49, 2")
    a("s_add_u32 s48, s48, s49")
    a("s_mul_i32 s48, s48, 3456")
    a("s_lshl_b32 s49, s45, 1")
    a("s_add_u32 s48, s48, s49")
    a("s_lshl_b32 s50, s46, 12")
    def issue(s):
        slot = (s % NS) * SLOT
        for i in range(4):
            a(f"s_add_u32 m0, s50, {slot + 16384 + 1024*i}")
            a(f"s_add_u32 s52, s48, {(64*s + 8*i)*3456}")
            a(f"buffer_load_dwordx4 v{vW[i&1]}, s[{SRD_B}:{SRD_B+3}], s52 offen lds")
            a(f"s_add_u32 m0, s50, {slot + 1024*i}")
            a(f"s_add_u32 s51, s47, {128*s + 1152*(i>>1)}")
            a(f"buffer_load_dwordx4 v{vX[i&1]}, s[{SRD_A}:{SRD_A+3}], s51 offen lds")
    for s in range(AH): issue(s)
    PF = env("PF", 1)
    if PF:
        a.c("L2 warm-up of stages 3..8 in stage order; each WG of the XCD touches its share (speed only)")
        a(f"s_cmp_eq_u32 s46, 3")
        a("s_cbranch_scc1 L_g_pfx")
        a("s_lshl_b32 s53, s43, 6")
        a(f"v_add_u32 v{t1}, s53, v0")
        a(f"v_mul_u32_u24 v{t2}, 18725, v{t1}")
        a(f"v_lshrrev_b32 v{t2}, 18, v{t2}")
        a(f"v_mul_u32_u24 v{t3}, 14, v{t2}")
        a(f"v_sub_u32 v{t3}, v{t1}, v{t3}")
        a(f"v_mul_u32_u24 v{t2}, 3456, v{t2}")
        a(f"v_lshl_add_u32 v{t2}, v{t3}, 7, v{t2}")
        a("s_lshr_b32 s54, s42, 2")
        a("s_mul_i32 s54, s54, 1792")
        a(f"s_mul_i32 s53, s46, {128*3456}")
        a("s_add_u32 s54, s54, s53")
        a(f"s_add_u32 s54, s54, {192*3456}")
        a(f"buffer_load_dword v7, v{t2}, s[{SRD_B}:{SRD_B+3}], s54 offen")
        a(f"buffer_load_dword v7, v{t2}, s[{SRD_B}:{SRD_B+3}], s54 offen offset:64")
        a("s_branch L_g_pfdone")
        a.label("L_g_pfx")
        a(f"v_mul_u32_u24 v{t2}, 21846, v0")
        a(f"v_lshrrev_b32 v{t2}, 16, v{t2}")
        a(f"v_mul_u32_u24 v{t3}, 3, v{t2}")
        a(f"v_sub_u32 v{t3}, v0, v{t3}")
        a(f"v_min_u32 v{t2}, 18, v{t2}")
        a("s_mul_i32 s53, s43, 19")
        a(f"v_add_u32 v{t2}, s53, v{t2}")
        a(f"v_min_u32 v{t2}, 511, v{t2}")
        a(f"v_mul_u32_u24 v{t2}, 1152, v{t2}")
        a(f"v_lshl_add_u32 v{t2}, v{t3}, 7, v{t2}")
        a("s_and_b32 s54, s42, 3")
        a(f"s_mul_i32 s54, s54, {512*1152}")
        a(f"buffer_load_dword v7, v{t2}, s[{SRD_A}:{SRD_A+3}], s54 offen offset:384")
        a(f"buffer_load_dword v7, v{t2}, s[{SRD_A}:{SRD_A+3}], s54 offen offset:768")
        a.label("L_g_pfdone")
    f_ssm.load_params(a, t0)
    extra = 6 + (2 if PF else 0)
    f_attn.attn_hoist(a, t0, t1, t2, t3)
    f_ssm.conv_hoist(a, t1, t2, t3, False)
    issued = AH - 1
    for s in range(9):
        a(f"s_waitcnt vmcnt({(issued - s) * 8 + (extra if s < AH else 0)})")
        a("s_barrier")
        if s + AH <= 8:
            issue(s + AH); issued = s + AH
    a(f"s_cmp_lg_u32 s{S_WAVE}, 5")
    a("s_cbranch_scc1 L_g_done")
    f_ssm.gen_ugather(a, st, f_ssm.UB, 0)
    a("s_branch L_g_done")
    a.label("L_g_compute")
    R = Regs(V0)
    vXa = [[R.alloc() for _ in range(2)] for _ in range(2)]
    vWa = [[R.alloc() for _ in range(2)] for _ in range(2)]
    vOff = R.alloc()
    FX = [[R.alloc(4, 4) for _ in range(8)] for _ in range(2)]
    FW = [[R.alloc(4, 4) for _ in range(2)] for _ in range(2)]
    ACC = [[R.alloc(4, 4) for _ in range(8)] for _ in range(2)]
    t0, t1, t2, t3 = [FX[1][0] + i for i in range(4)]
    a("s_mov_b32 s62, s44")
    a("s_mov_b32 s63, s45")
    f_ssm.load_params(a, t0)
    a("s_mov_b32 s44, s62")
    a("s_mov_b32 s45, s63")
    f_attn.attn_hoist(a, t0, t1, t2, t3)
    a(f"v_and_b32 v{t0}, 15, v0")
    a(f"v_lshrrev_b32 v{t1}, 4, v0")
    a(f"v_bfe_u32 v{t2}, v0, 1, 3")
    a(f"v_xor_b32 v{t2}, v{t2}, v{t1}")
    a(f"v_lshlrev_b32 v{t3}, 7, v{t0}")
    a(f"v_lshl_add_u32 v{vXa[0][0]}, v{t2}, 4, v{t3}")
    a(f"v_xor_b32 v{vXa[0][1]}, 64, v{vXa[0][0]}")
    a(f"v_add_u32 v{vXa[1][0]}, {2*SLOT}, v{vXa[0][0]}")
    a(f"v_add_u32 v{vXa[1][1]}, {2*SLOT}, v{vXa[0][1]}")
    a(f"v_lshlrev_b32 v{vOff}, 14, v{t1}")
    a(f"v_lshl_add_u32 v{vOff}, v{t0}, 4, v{vOff}")
    a(f"v_lshrrev_b32 v{t2}, 2, v0")
    a(f"v_and_b32 v{t3}, 7, v{t2}")
    a(f"s_lshl_b32 s46, s{S_WAVE}, 1")
    a(f"v_xor_b32 v{t3}, s46, v{t3}")
    a(f"v_lshlrev_b32 v{t2}, 8, v{t2}")
    a(f"v_lshl_add_u32 v{t2}, v{t3}, 5, v{t2}")
    a(f"v_and_b32 v{t3}, 3, v0")
    a(f"v_lshl_add_u32 v{t2}, v{t3}, 3, v{t2}")
    a(f"v_add_u32 v{vWa[0][0]}, 16384, v{t2}")
    a(f"v_xor_b32 v{vWa[0][1]}, 32, v{vWa[0][0]}")
    a(f"v_add_u32 v{vWa[1][0]}, {2*SLOT}, v{vWa[0][0]}")
    a(f"v_add_u32 v{vWa[1][1]}, {2*SLOT}, v{vWa[0][1]}")
    a(f"s_lshl_b32 s46, s{S_WAVE}, 5")
    a("s_add_u32 s46, s46, s45")
    a("s_lshl_b32 s47, s46, 12")
    a("s_lshl_b32 s48, s44, 1")
    a("s_add_u32 s47, s47, s48")
    def reads(u):
        s, kk = u >> 1, u & 1
        sl = s % NS; hf = sl >> 1; so = (sl & 1) * SLOT
        L = []
        for jj in range(2):
            for y in range(2):
                L.append(f"ds_read_b64_tr_b16 {vr(FW[u&1][jj]+2*y,2)}, v{vWa[hf][jj]} offset:{so + 8192*kk + 4096*y}")
        for i in range(8):
            L.append(f"ds_read_b128 {vr(FX[u&1][i],4)}, v{vXa[hf][kk]} offset:{so + 2048*i}")
        return L
    def mfmas(u):
        L = []
        for i in range(8):
            for jj in range(2):
                c = "0" if u == 0 else vr(ACC[jj][i], 4)
                L.append(f"v_mfma_f32_16x16x32_bf16 {vr(ACC[jj][i],4)}, {vr(FW[u&1][jj],4)}, {vr(FX[u&1][i],4)}, {c}")
        return L
    st.stamp(2)
    a("s_barrier")
    st.stamp(3)
    for l in reads(0): a(l)
    for u in range(18):
        a("s_waitcnt lgkmcnt(0)")
        rd = []
        if u + 1 < 18:
            if (u + 1) % 2 == 0: a("s_barrier")
            rd = reads(u + 1)
        for m in mfmas(u):
            a(m)
            if rd: a(rd.pop(0))
        assert not rd
    st.stamp(4)
    a("s_waitcnt vmcnt(0)")
    a("s_cmp_ge_u32 s46, 1728")
    a("s_cbranch_scc1 L_g_done")
    a("s_cmp_ge_u32 s46, 576")
    a("s_nop 5")
    a("s_cbranch_scc1 L_g_noscale")
    C = (18 ** -0.5) * 1.4426950408889634
    a(f"s_mov_b32 s48, {fb(C):#x}")
    a("s_mov_b32 s49, s48")
    for i in range(8):
        for jj in range(2):
            for h in range(2):
                r = ACC[jj][i] + 2*h
                a(f"v_pk_mul_f32 {vr(r,2)}, {vr(r,2)}, s[48:49]")
    a.label("L_g_noscale")
    n = 0
    for jj in range(2):
        for r in range(4):
            d = FX[0][n]; n += 1
            for q in range(4):
                a(f"v_cvt_pk_bf16_f32 v{d+q}, v{ACC[jj][2*q]+r}, v{ACC[jj][2*q+1]+r}")
            a(f"s_add_u32 s48, s47, {(16*jj + r)*4096}")
            a(f"buffer_store_dwordx4 {vr(d,4)}, v{vOff}, s[{SRD_WS}:{SRD_WS+3}], s48 offen sc1")
    a.label("L_g_done")
    return R.n

UTL = 69632
VU = 214
def gen_free(a, st):
    R = Regs(V0)
    t0, t1, t2, t3 = [R.alloc() for _ in range(4)]
    vU, vUo = VU, VU + 1
    f_ssm.load_params(a, t0)
    srd(a, SRD_A, P_U, 2048*1152)
    a("s_sub_u32 s44, s43, 28")
    a("s_lshl_b32 s45, s42, 8")
    a(f"s_lshl_b32 s46, s{S_WAVE}, 5")
    a("s_add_u32 s45, s45, s46")
    a("s_mul_i32 s46, s45, 1152")
    a("s_mul_i32 s47, s44, 288")
    a("s_add_u32 s46, s46, s47")
    a(f"s_mul_i32 s48, s{S_WAVE}, 9216")
    a(f"s_add_u32 s48, s48, {UTL}")
    for i in range(9):
        a(f"v_add_u32 v{t0}, {64*i}, v0")
        a(f"v_mul_u32_u24 v{t1}, 3641, v{t0}")
        a(f"v_lshrrev_b32 v{t1}, 16, v{t1}")
        a(f"v_mul_u32_u24 v{t2}, {1152 - 288}, v{t1}")
        a(f"v_lshl_add_u32 v{t2}, v{t0}, 4, v{t2}")
        a(f"s_add_u32 m0, s48, {1024*i}")
        a("s_nop 0")
        a(f"buffer_load_dwordx4 v{t2}, s[{SRD_A}:{SRD_A+3}], s46 offen lds")
    for idv in range(576): assert (idv * 3641) >> 16 == idv // 18
    a(f"v_lshrrev_b32 v{t0}, 4, v0")
    a(f"v_bfe_u32 v{t1}, v0, 2, 2")
    a(f"v_lshl_add_u32 v{t1}, v{t0}, 3, v{t1}")
    a(f"v_mul_u32_u24 v{vU}, 288, v{t1}")
    a(f"v_and_b32 v{t1}, 3, v0")
    a(f"v_lshl_add_u32 v{vU}, v{t1}, 3, v{vU}")
    a(f"v_add_u32 v{vU}, s48, v{vU}")
    a(f"v_mul_u32_u24 v{vUo}, 9216, v{t0}")
    a(f"v_and_b32 v{t1}, 15, v0")
    a(f"v_lshl_add_u32 v{vUo}, v{t1}, 4, v{vUo}")
    a("s_lshr_b32 s61, s45, 3")
    a("s_mul_i32 s61, s61, 9216")
    a("s_mul_i32 s47, s44, 2304")
    a("s_add_u32 s61, s61, s47")
    a(f"s_add_u32 s61, s61, {WS_UT8:#x}")
    f_attn.attn_hoist(a, t0, t1, t2, t3)
    f_ssm.conv_hoist(a, t1, t2, t3, True)
    a("s_waitcnt vmcnt(9)")
    return VU + 2

def ut_finish(a):
    R = Regs(V0)
    t0, t1 = R.alloc(), R.alloc()
    F = [R.alloc(4, 4) for _ in range(9)]
    a("s_waitcnt vmcnt(0)")
    for half in range(2):
        js = range(0, 5) if half == 0 else range(5, 9)
        for j in js:
            for y in range(2):
                a(f"ds_read_b64_tr_b16 {vr(F[j]+2*y,2)}, v{VU} offset:{4*288*y + 32*j}")
        a("s_waitcnt lgkmcnt(0)")
        for j in js:
            a(f"buffer_store_dwordx4 {vr(F[j],4)}, v{VU+1}, s[{SRD_WS}:{SRD_WS+3}], s61 offen offset:{256*j} sc1")
    a("s_cmp_lg_u32 s2, 224")
    a("s_cbranch_scc1 L_u_nozero")
    a(f"s_cmp_lg_u32 s{S_WAVE}, 1")
    a("s_cbranch_scc1 L_u_nozero")
    a(f"v_lshlrev_b32 v{t0}, 7, v0")
    a(f"v_mov_b32 v{t1}, 0")
    a(f"s_mov_b32 s44, {WS_CNT:#x}")
    a(f"buffer_store_dword v{t1}, v{t0}, s[{SRD_WS}:{SRD_WS+3}], s44 offen sc1")
    a.label("L_u_nozero")
```

```python
from fcommon import *
TP = 272
TAB = 64 * TP
LOG2E = 1.4426950408889634
CP = 4160
KC = 76800
RED = KC + 8 * CP
UB = RED + 8 * CP
KC2, UB2 = RED, 153600
assert UB >= 131072 and UB + 9216 <= 153536
VC = 208

def load_params(a, tmp):
    a(f"s_lshl_b32 s44, s{S_PAIR}, 1")
    a(f"s_bfe_u32 s45, s{S_WAVE}, 0x10001")
    a("s_add_u32 s44, s44, s45")
    a("s_lshl_b32 s45, s44, 8")
    a(f"v_lshlrev_b32 v{tmp}, 2, v0")
    a(f"v_add_u32 v{tmp}, s45, v{tmp}")
    a("s_lshl_b32 s45, s44, 1")
    a(f"v_mov_b32 v{tmp+1}, s45")
    a(f"global_load_ushort v1, v{tmp+1}, s[{P_LDT}:{P_LDT+1}]")
    a(f"global_load_dword v2, v{tmp}, s[{P_LAR}:{P_LAR+1}]")
    a(f"global_load_dword v3, v{tmp}, s[{P_AIM}:{P_AIM+1}]")
    a(f"global_load_dword v4, v{tmp}, s[{P_CRE}:{P_CRE+1}]")
    a(f"global_load_dword v5, v{tmp}, s[{P_CIM}:{P_CIM+1}]")
    a(f"global_load_ushort v6, v{tmp+1}, s[{P_DSK}:{P_DSK+1}]")

def gen_kgen_tables(a, st):
    vDt, vLar, vAim, vCre, vCim, vDsk = 1, 2, 3, 4, 5, 6
    R = Regs(V0)
    t0, t1, t2, t3 = [R.alloc() for _ in range(4)]
    vZr, vZi = R.alloc(), R.alloc()
    EA, EB = R.alloc(2), R.alloc(2)
    G = [R.alloc(2) for _ in range(9)]
    H = [R.alloc(2) for _ in range(5)]
    cv = [R.alloc() for _ in range(6)]
    a(f"s_and_b32 s44, s{S_WAVE}, 3")
    a(f"s_mul_i32 s44, s44, {TAB}")
    a("s_mov_b32 m0, s44")
    a(f"s_mov_b32 s52, {fb(LOG2E):#x}")
    a(f"s_mov_b32 s53, {fb(LOG2E - struct.unpack('<f', struct.pack('<f', LOG2E))[0]):#x}")
    a(f"s_mov_b32 s54, {fb(math.log(2.0)):#x}")
    a(f"s_bitcmp1_b32 s{S_WAVE}, 0")
    a("s_cselect_b32 s45, 0, 16")
    def exp_bf16(dst, x, ta, tb):
        a(f"v_mul_f32 v{ta}, s52, v{x}")
        a(f"v_exp_f32 v{dst}, v{ta}")
        a(f"v_fma_f32 v{tb}, v{x}, s52, -v{ta}")
        a(f"v_fma_f32 v{tb}, v{x}, s53, v{tb}")
        a(f"v_mul_f32 v{tb}, s54, v{tb}")
        a(f"v_fma_f32 v{dst}, v{dst}, v{tb}, v{dst}")
        a(f"v_cvt_pk_bf16_f32 v{dst}, 0, v{dst}")
    def unpack(dst, src):
        a(f"v_lshlrev_b32 v{dst}, s45, v{src}")
        a(f"v_and_b32 v{dst}, 0xffff0000, v{dst}")
    a(f"v_lshlrev_b32 v{t3}, 16, v{vDt}")
    exp_bf16(vDt, t3, t0, t1)
    unpack(t3, vLar)
    exp_bf16(vZr, t3, t0, t1)
    unpack(vZi, vAim)
    a(f"v_mul_f32 v{vZr}, v{vZr}, v{vDt}")
    a(f"v_mul_f32 v{vZi}, v{vZi}, v{vDt}")
    a(f"v_mul_f32 v{vZr}, {fb(-LOG2E):#x}, v{vZr}")
    a(f"v_mul_f32 v{vZi}, 0.15915494, v{vZi}")
    a(f"s_bitcmp0_b32 s{S_WAVE}, 2")
    a(f"s_cselect_b32 s46, {fb(8.0):#x}, 1.0")
    a(f"s_mov_b32 s47, {fb(256.0):#x}")
    a(f"s_cselect_b32 s47, {fb(64.0):#x}, s47")
    for (E, p) in ((EA, 46), (EB, 47)):
        a(f"v_mul_f32 v{t0}, s{p}, v{vZi}")
        a(f"v_mul_f32 v{t1}, s{p}, v{vZr}")
        a(f"v_fract_f32 v{t0}, v{t0}")
        a(f"v_exp_f32 v{t1}, v{t1}")
        a(f"v_cos_f32 v{E}, v{t0}")
        a(f"v_sin_f32 v{E+1}, v{t0}")
        a(f"v_mul_f32 v{E}, v{E}, v{t1}")
        a(f"v_mul_f32 v{E+1}, v{E+1}, v{t1}")
    def cmul(d, x, y):
        a(f"v_pk_mul_f32 {vr(d,2)}, {vr(x,2)}, {vr(y,2)} op_sel:[0,0] op_sel_hi:[0,1]")
        a(f"v_pk_fma_f32 {vr(d,2)}, {vr(x,2)}, {vr(y,2)}, {vr(d,2)} op_sel:[1,1,0] op_sel_hi:[1,0,1] neg_lo:[1,0,0]")
    cvi = [0]
    def put(src, rows, neg):
        c = cv[cvi[0] % 6]; cvi[0] += 1
        a(f"v_cvt_pk_f16_f32 v{c}, v{src}, {'-' if neg else ''}v{src+1}")
        for r in rows:
            a(f"ds_write_addtid_b32 v{c} offset:{r*TP}")
    rho = lambda h, r: 8*(r >> 2) + 4*h + (r & 3)
    a("s_cbranch_scc1 L_k_y")
    a(f"v_and_b32 v{t0}, 0x7fff7fff, v{vCre}")
    a(f"v_and_b32 v{t1}, 0x7fff7fff, v{vCim}")
    a(f"v_pk_max_u16 v{t0}, v{t0}, v{t1}")
    a(f"v_lshlrev_b32 v{t1}, 16, v{t0}")
    a(f"v_max_u32 v{t0}, v{t0}, v{t1}")
    for dpp in ("row_shr:1 row_mask:0xf", "row_shr:2 row_mask:0xf", "row_shr:4 row_mask:0xf", "row_shr:8 row_mask:0xf",
                "row_bcast:15 row_mask:0xa", "row_bcast:31 row_mask:0xc"):
        a("s_nop 1")
        a(f"v_max_u32_dpp v{t0}, v{t0}, v{t0} {dpp} bank_mask:0xf")
    unpack(G[0], vCre)
    a(f"v_readlane_b32 s55, v{t0}, 63")
    unpack(G[0]+1, vCim)
    a("s_lshr_b32 s55, s55, 23")
    a("s_max_u32 s55, s55, 1")
    a("s_min_u32 s55, s55, 252")
    a("s_sub_u32 s56, 254, s55")
    a("s_lshl_b32 s56, s56, 23")
    a("s_add_u32 s55, s55, 1")
    a("s_lshl_b32 s55, s55, 23")
    a(f"v_mul_f32 v{G[0]}, s56, v{G[0]}")
    a(f"v_mul_f32 v{G[0]+1}, s56, v{G[0]+1}")
    a(f"v_mul_f32 v{vDt}, s55, v{vDt}")
    E1, E256 = EA, EB
    for step in range(8):
        cmul(G[step+1], G[step], E1)
        put(G[step], [rho(0, step)], True)
    b1rows = {0: [rho(1,0), rho(1,1)], 1: [rho(1,2)], 2: [rho(1,3), rho(1,4), rho(1,5)], 3: [rho(1,6)], 4: [rho(1,7)]}
    for i in range(5): cmul(H[i], G[2*i], E256)
    for i in range(3):
        cmul(G[i], H[2*i], E256)
        put(H[2*i], b1rows[2*i], True)
    put(H[1], b1rows[1], True); put(H[3], b1rows[3], True)
    for i in range(3):
        cmul(H[i], G[i], E256)
        put(G[i], [rho(0, 8+i)], True)
    src = [H[0], H[2]]
    pend = [(H[i], [rho(1, 8+i)]) for i in range(3)]
    dsts = [[G[3], G[4]], [G[5], G[6]]]
    for B in range(4, 8):
        d = dsts[B & 1]
        for i in range(2): cmul(d[i], src[i], E256)
        for p in pend: put(p[0], p[1], True)
        h, r0 = B & 1, 12 + 2*((B - 4) >> 1)
        pend = [(d[i], [rho(h, r0+i)]) for i in range(2)]
        src = d
    for p in pend: put(p[0], p[1], True)
    a("s_branch L_k_tabs_done")
    a.label("L_k_y")
    E8, E64 = EA, EB
    Y = [[G[0], G[1]], [G[2], G[3]], [G[4], G[5]], [G[6], G[7]]]
    a(f"v_mov_b32 v{cv[5]}, 0x3c00")
    a(f"ds_write_addtid_b32 v{cv[5]} offset:{32*TP}")
    cvi[0] = 0
    cmul(Y[2][0], E64, E64)
    put(E8, [33], False)
    cmul(Y[3][0], Y[2][0], E64)
    put(E64, [40], False)
    put(Y[2][0], [48], False)
    put(Y[3][0], [56], False)
    cur = [E8, E64, Y[2][0], Y[3][0]]
    pos = [1, 0, 0, 0]
    flip = [0, 0, 1, 1]
    for step in range(7):
        for c in range(4):
            if pos[c] < 7:
                d = Y[c][flip[c]]; flip[c] ^= 1
                cmul(d, cur[c], E8); cur[c] = d; pos[c] += 1
                put(d, [32 + 8*c + pos[c]], False)
    a.label("L_k_tabs_done")
    return R.n

def gen_kgen_mfma(a, st):
    vDt, vDsk = 1, 6
    R = Regs(V0)
    t0, t1, vRd, vL16 = [R.alloc() for _ in range(4)]
    FA = [R.alloc(4, 4) for _ in range(16)]
    FB = [R.alloc(4, 4) for _ in range(16)]
    ACC = R.alloc(16, 4)
    a(f"s_mul_i32 s45, s44, {2*TAB}")
    a(f"v_and_b32 v{t0}, 31, v0")
    a(f"v_mul_u32_u24 v{vRd}, {TP}, v{t0}")
    a(f"v_lshrrev_b32 v{t0}, 5, v0")
    a(f"v_lshl_add_u32 v{vRd}, v{t0}, 4, v{vRd}")
    a(f"v_add_u32 v{vRd}, s45, v{vRd}")
    def rd(ks):
        off = (ks >> 3) * TAB + 32 * (ks & 7)
        a(f"ds_read_b128 {vr(FA[ks],4)}, v{vRd} offset:{off}")
        a(f"ds_read_b128 {vr(FB[ks],4)}, v{vRd} offset:{off + 32*TP}")
    for ks in range(6): rd(ks)
    a(f"v_lshlrev_b32 v{vL16}, 4, v0")
    a(f"v_lshlrev_b32 v{vDsk}, 16, v{vDsk}")
    a("v_cmp_eq_u32 vcc, 0, v0")
    a(f"v_and_b32 v{t0}, 1, v0")
    a(f"s_mul_i32 s46, s44, {4*CP}")
    a(f"v_cndmask_b32 v{vDsk}, 0, v{vDsk}, vcc")
    a(f"v_cmp_eq_u32 vcc, 1, v{t0}")
    a(f"s_mul_i32 s47, s{S_ROUND}, {KC2 - KC}")
    a("s_add_u32 s46, s46, s47")
    a(f"s_add_u32 s46, s46, {KC}")
    a(f"v_lshrrev_b32 v{t0}, 4, v0")
    a(f"v_mul_u32_u24 v{t0}, {CP}, v{t0}")
    a(f"v_and_b32 v{t1}, 15, v0")
    a(f"v_lshl_add_u32 v{t0}, v{t1}, 2, v{t0}")
    a(f"v_add_u32 v{t0}, s46, v{t0}")
    a(f"v_add_u32 v{vL16}, s46, v{vL16}")
    a(f"v_mov_b32 v{t1}, 0")
    for ks in range(16):
        left = min(16, ks + 6) - (ks + 1)
        a(f"s_waitcnt lgkmcnt({2*left})")
        c = "0" if ks == 0 else vr(ACC, 16)
        a(f"v_mfma_f32_32x32x16_f16 {vr(ACC,16)}, {vr(FA[ks],4)}, {vr(FB[ks],4)}, {c}")
        if ks + 6 < 16: rd(ks + 6)
    a(f"ds_write_b32 v{t0}, v{t1}")
    a("s_nop 10")
    a(f"v_fma_f32 v{ACC}, v{ACC}, v{vDt}, v{vDsk}")
    for i in range(1, 8): a(f"v_mul_f32 v{ACC+i}, v{ACC+i}, v{vDt}")
    pk = lambda d, x, y: a(f"v_cvt_pk_bf16_f32 v{d}, v{x}, v{y}")
    def st4(sl):
        a(f"ds_write_b128 v{vL16}, {vr(FA[sl],4)} offset:{64 + 1024*sl}")
        a(f"ds_read_b64 {vr(FB[sl],2)}, v{vL16} offset:{56 + 1024*sl}")
    for i in range(4): pk(FA[0]+i, ACC+2*i, ACC+2*i+1)
    st4(0)
    for i in range(8, 16):
        if i != 11: a(f"v_mul_f32 v{ACC+i}, v{ACC+i}, v{vDt}")
    pk(FA[1], ACC+8, ACC+8); pk(FA[1]+1, ACC+8, ACC+9); pk(FA[1]+2, ACC+9, ACC+9); pk(FA[1]+3, ACC+10, ACC+10)
    st4(1)
    for sl in range(2):
        x, y = ACC + 12 + 2*sl, ACC + 13 + 2*sl
        d = FA[2+sl]
        a(f"v_cndmask_b32 v{t0}, v{x}, v{y}, vcc")
        pk(d, x, x); pk(d+1, x, x); pk(d+2, t0, y); pk(d+3, y, y)
        st4(2 + sl)
    st.stamp(9)
    a.c("copies shifted by 1, 2, 3 elements")
    for sl in range(4):
        d, p = FA[sl], FB[sl]
        s1, s2, s3 = FA[4+3*sl], FA[5+3*sl], FA[6+3*sl]
        seq = [p, p+1, d, d+1, d+2, d+3]
        for i in range(1, 4): a(f"v_alignbit_b32 v{s1+i}, v{seq[i+2]}, v{seq[i+1]}, 16")
        for i in range(2, 4): a(f"v_alignbit_b32 v{s3+i}, v{seq[i+1]}, v{seq[i]}, 16")
        for i in range(1, 4): a(f"v_mov_b32 v{s2+i}, v{seq[i+1]}")
        a(f"s_waitcnt lgkmcnt({[6, 7, 8, 9][sl]})")
        a(f"v_alignbit_b32 v{s1}, v{seq[2]}, v{seq[1]}, 16")
        a(f"v_mov_b32 v{s2}, v{seq[1]}")
        for i in range(0, 2): a(f"v_alignbit_b32 v{s3+i}, v{seq[i+1]}, v{seq[i]}, 16")
        for x, r in ((1, s1), (2, s2), (3, s3)):
            a(f"ds_write_b128 v{vL16}, {vr(r,4)} offset:{64 + 1024*sl + x*CP}")
    a("s_waitcnt lgkmcnt(0)")
    return R.n

def u_pads(a, t1, z, ub):
    a(f"v_mov_b32 v{z}, 0")
    a(f"v_mov_b32 v{z+1}, 0")
    a(f"v_lshlrev_b32 v{t1}, 3, v0")
    a(f"v_add_u32 v{t1}, {ub}, v{t1}")
    for c in range(2):
        a(f"ds_write_b64 v{t1}, {vr(z,2)} offset:{c*4608}")

def gen_ugather(a, st, ub, dpair):
    R = Regs(V0)
    t0, t1, t2, t3 = [R.alloc() for _ in range(4)]
    z = R.alloc(2)
    a("s_movk_i32 s44, 128")
    poll(a, SRD_DBG, "s44", 1, t2, sleep=env("USLEEP", 4))
    a(f"v_mul_u32_u24 v{t0}, 9216, v0")
    a(f"s_lshl_b32 s44, s{S_PAIR}, 5")
    a(f"s_add_u32 s44, s44, {WS_UT8 + 32*dpair:#x}")
    for i in range(4):
        for c in range(2):
            a(f"s_mov_b32 m0, {ub + c*4608 + 512 + 1024*i}")
            a(f"s_add_u32 s45, s44, {64*9216*i + 16*c}")
            a(f"buffer_load_dwordx4 v{t0}, s[{SRD_WS}:{SRD_WS+3}], s45 offen {LD} lds")
    u_pads(a, t1, z, ub)
    return R.n

def conv_hoist(a, t1, t2, t3, free):
    vA, vB, vW, vR = [VC + i for i in range(4)]; vL = 180
    if free:
        a(f"s_cmp_lt_u32 s{S_WAVE}, 4")
        a(f"s_cselect_b32 s51, {KC2 - KC}, 0")
        a(f"s_cselect_b32 s52, {UB2 - UB}, 0")
        a("s_cselect_b32 s53, 0, 0x8000")
    a(f"s_bfe_u32 s54, s{S_WAVE}, 0x10001")
    a(f"s_and_b32 s55, s{S_WAVE}, 1")
    a(f"s_mul_i32 s56, s54, {4*CP}")
    a("s_lshl_b32 s57, s55, 8")
    a(f"v_bfe_u32 v{t1}, v0, 2, 2")
    a(f"v_mul_u32_u24 v{vA}, {CP}, v{t1}")
    a(f"v_and_b32 v{t2}, 3, v0")
    a(f"v_lshl_add_u32 v{vA}, v{t2}, 3, v{vA}")
    a(f"v_and_b32 v{t2}, 48, v0")
    a(f"v_sub_u32 v{vA}, v{vA}, v{t2}")
    a("s_add_u32 s56, s56, s57")
    a(f"s_add_u32 s56, s56, {KC + 88}")
    if free: a("s_add_u32 s56, s56, s51")
    a(f"v_add_u32 v{vA}, s56, v{vA}")
    a(f"v_and_b32 v{t3}, 15, v0")
    a(f"v_lshl_add_u32 v{vB}, v{t3}, 5, v{t2}")
    a("s_mul_i32 s56, s54, 4608")
    a("s_sub_u32 s56, s56, s57")
    a(f"s_add_u32 s56, s56, {UB + 32 + 256}")
    if free: a("s_add_u32 s56, s56, s52")
    a(f"v_add_u32 v{vB}, s56, v{vB}")
    a(f"s_and_b32 s56, s{S_WAVE}, 3")
    a("s_lshl_b32 s56, s56, 13")
    a(f"s_add_u32 s56, s56, {'s53' if free else RED}")
    a(f"v_add_u32 v{vW}, s56, v{vL}")
    a(f"v_bfe_u32 v{t1}, v0, 1, 4")
    a(f"v_lshlrev_b32 v{vR}, 4, v{t1}")
    a(f"v_and_b32 v{t1}, 1, v0")
    a(f"v_lshl_add_u32 v{vR}, v{t1}, 9, v{vR}")
    a(f"v_lshrrev_b32 v{t1}, 5, v0")
    a(f"v_lshl_add_u32 v{vR}, v{t1}, 10, v{vR}")
    a("s_lshl_b32 s56, s54, 14")
    a("s_lshl_b32 s57, s55, 12")
    a("s_add_u32 s56, s56, s57")
    a(f"s_add_u32 s56, s56, {'s53' if free else RED}")
    a(f"v_add_u32 v{vR}, s56, v{vR}")

def gen_conv_main(a, st):
    R = Regs(V0)
    vA, vB, vW, vR = [VC + i for i in range(4)]; vL = 180
    FA = [[R.alloc(4, 4) for _ in range(8)] for _ in range(2)]
    FB = [[R.alloc(4, 4) for _ in range(8)] for _ in range(2)]
    ACC = [R.alloc(4, 4) for _ in range(8)]
    def rdA(mu, i): return [f"ds_read_b64_tr_b16 {vr(FA[mu&1][i]+2*y,2)}, v{vA} offset:{64*(mu + 8*i) + 8*(1-y)}" for y in range(2)]
    def rdB(mu, i): return [f"ds_read_b128 {vr(FB[mu&1][i],4)}, v{vB} offset:{64*(8*i - mu + 3)}"]
    def reads(mu):
        L = []
        for i in range(8): L += rdA(mu, i) + rdB(mu, i)
        return L
    def mf(mu, aa, t, first):
        c = "0" if first else vr(ACC[t], 4)
        return f"v_mfma_f32_16x16x32_bf16 {vr(ACC[t],4)}, {vr(FA[mu&1][aa],4)}, {vr(FB[mu&1][t-aa],4)}, {c}"
    for l in reads(0)[:15]: a(l)
    rest0 = reads(0)[15:]
    a(f"s_lshl_b32 s53, s{S_PAIR}, 13")
    a(f"s_and_b32 s54, s{S_WAVE}, 3")
    a("s_lshl_b32 s54, s54, 11")
    a("s_add_u32 s53, s53, s54")
    a(f"s_add_u32 s53, s53, {WS_YT:#x}")
    rd = rest0 + reads(1)
    issued = 15
    seen = set()
    for i in range(8):
        a(f"s_waitcnt lgkmcnt({min(15, issued - 3*(i+1))})")
        for aa in range(i + 1):
            for b in range(i + 1):
                if max(aa, b) == i and aa + b < 8:
                    t = aa + b
                    a(mf(0, aa, t, t not in seen)); seen.add(t)
                    if rd and issued - 3*(i+1) < 12:
                        a(rd.pop(0)); issued += 1
        while issued < min(24, 3*(i+2)):
            a(rd.pop(0)); issued += 1
    for l in rd: a(l)
    for mu in range(1, 4):
        a("s_waitcnt lgkmcnt(0)")
        rd = reads(mu + 1) if mu < 3 else []
        for aa in range(8):
            for t in range(aa, 8):
                a(mf(mu, aa, t, False))
                if rd: a(rd.pop(0))
                if mu == 3 and t == 7 and 2 <= aa <= 6:
                    a(f"ds_write_b128 v{vW}, {vr(ACC[aa-2],4)} offset:{1024*(aa-2)}")
        assert not rd
    a("s_nop 1")
    a(f"ds_write_b128 v{vW}, {vr(ACC[5],4)} offset:{1024*5}")
    a("s_nop 3")
    a(f"ds_write_b128 v{vW}, {vr(ACC[6],4)} offset:{1024*6}")
    a("s_nop 0")
    a(f"ds_write_b128 v{vW}, {vr(ACC[7],4)} offset:{1024*7}")
    a("s_waitcnt lgkmcnt(0)")
    st.stamp(13)
    a("s_barrier")
    for i in range(2):
        for p in range(2):
            for e in range(2):
                a(f"ds_read_b128 {vr(FA[i][2*p+e],4)}, v{vR} offset:{2048*i + 8192*p + 256*e}")
    for i in range(2):
        a(f"s_waitcnt lgkmcnt({4*(1-i)})")
        for e in range(2):
            for h in range(2):
                a(f"v_pk_add_f32 {vr(FA[i][e]+2*h,2)}, {vr(FA[i][e]+2*h,2)}, {vr(FA[i][2+e]+2*h,2)}")
        for e in range(2):
            for h in range(2):
                a(f"v_cvt_pk_bf16_f32 v{FB[0][i]+2*e+h}, v{FA[i][e]+2*h}, v{FA[i][e]+2*h+1}")
        a(f"buffer_store_dwordx4 {vr(FB[0][i],4)}, v{vL}, s[{SRD_WS}:{SRD_WS+3}], s53 offen offset:{1024*i} sc1")
    return R.n
```

```python
from fcommon import *
PW = 224
WLDS = 576 * PW
STG = WLDS

def gen_ytrans(a, st):
    R = Regs(V0)
    t0, t1, t2, t3 = [R.alloc() for _ in range(4)]
    vS_, vT, vO = [R.alloc() for _ in range(3)]
    F = [R.alloc(4, 4) for _ in range(6)]
    W = f"s[{SRD_WS}:{SRD_WS+3}]"
    srd(a, SRD_A, P_OUT, 2048*2304)
    a(f"s_cmp_lg_u32 s{S_WAVE}, 0")
    a("s_cbranch_scc1 L_t_wait")
    a(f"s_mov_b32 s44, {CNT_Y + RDY:#x}")
    poll(a, SRD_WS, "s44", 1, t1)
    a.label("L_t_wait")
    a("s_barrier")
    a(f"s_cmp_ge_u32 s{S_WAVE}, 6")
    a("s_cbranch_scc1 L_end")
    a("s_lshl_b32 s44, s42, 3")
    a("s_add_u32 s44, s44, s43")
    a("s_sub_u32 s44, s44, 24")
    a("s_lshl_b32 s44, s44, 5")
    a(f"s_mul_i32 s45, s{S_WAVE}, {96*4096}")
    a("s_lshl_b32 s46, s44, 1")
    a("s_add_u32 s45, s45, s46")
    a(f"s_add_u32 s45, s45, {WS_YT:#x}")
    a(f"s_mul_i32 s46, s{S_WAVE}, 6144")
    a(f"v_lshrrev_b32 v{vS_}, 2, v0")
    a(f"v_lshlrev_b32 v{vS_}, 12, v{vS_}")
    a(f"v_and_b32 v{t1}, 3, v0")
    a(f"v_lshl_add_u32 v{vS_}, v{t1}, 4, v{vS_}")
    for i in range(6):
        a(f"s_add_u32 m0, s46, {1024*i}")
        a(f"s_add_u32 s47, s45, {16*4096*i}")
        a(f"buffer_load_dwordx4 v{vS_}, {W}, s47 offen {LD} lds")
    a(f"v_lshrrev_b32 v{t0}, 4, v0")
    a(f"v_bfe_u32 v{t2}, v0, 2, 2")
    a(f"v_lshl_add_u32 v{t2}, v{t0}, 3, v{t2}")
    a(f"v_lshlrev_b32 v{vT}, 6, v{t2}")
    a(f"v_lshl_add_u32 v{vT}, v{t1}, 3, v{vT}")
    a(f"v_add_u32 v{vT}, s46, v{vT}")
    a(f"v_and_b32 v{t1}, 15, v0")
    a(f"v_mul_u32_u24 v{vO}, 2304, v{t1}")
    a(f"v_lshl_add_u32 v{vO}, v{t0}, 4, v{vO}")
    a("s_mul_i32 s47, s44, 2304")
    a(f"s_mul_i32 s48, s{S_WAVE}, 192")
    a("s_add_u32 s47, s47, s48")
    a("s_add_u32 s47, s47, 1152")
    a(f"s_add_u32 s48, s47, {16*2304}")
    a("s_waitcnt vmcnt(0)")
    for j in range(3):
        for th in range(2):
            for y in range(2):
                a(f"ds_read_b64_tr_b16 {vr(F[2*j+th]+2*y,2)}, v{vT} offset:{2048*j + 256*y + 32*th}")
    for j in range(3):
        for th in range(2):
            a(f"s_waitcnt lgkmcnt({10 - 2*(2*j+th)})")
            a(f"buffer_store_dwordx4 {vr(F[2*j+th],4)}, v{vO}, s[{SRD_A}:{SRD_A+3}], s{47+th} offen offset:{64*j}")
    return R.n

def gen_proj(a, st):
    R = Regs(V0)
    t0, t1, t2, t3 = [R.alloc() for _ in range(4)]
    vM, vE, vWa0, vWa1, vXo, vEo = [R.alloc() for _ in range(6)]
    FX = [R.alloc(4, 4) for _ in range(18)]
    FW = [[R.alloc(4, 4) for _ in range(6)] for _ in range(2)]
    ACC = [R.alloc(4, 4) for _ in range(6)]
    W = f"s[{SRD_WS}:{SRD_WS+3}]"
    srd(a, SRD_A, P_OUT, 2048*2304); srd(a, SRD_B, P_WO, 576*1152)
    a("s_lshr_b32 s45, s43, 2")
    a("s_mul_i32 s45, s45, 192")
    a("s_lshl_b32 s44, s42, 2")
    a("s_and_b32 s46, s43, 3")
    a("s_add_u32 s44, s44, s46")
    a("s_lshl_b32 s44, s44, 6")
    a(f"s_cmp_eq_u32 s{S_WAVE}, 7")
    a("s_cbranch_scc1 L_p_poll")
    a(f"s_lshl_b32 s46, s{S_WAVE}, 6")
    a(f"v_add_u32 v{t0}, s46, v0")
    a(f"v_mul_u32_u24 v{t1}, 4682, v{t0}")
    a(f"v_lshrrev_b32 v{t1}, 16, v{t1}")
    a(f"v_mul_u32_u24 v{t2}, 14, v{t1}")
    a(f"v_sub_u32 v{t0}, v{t0}, v{t2}")
    a(f"v_lshrrev_b32 v{t2}, 4, v{t1}")
    a(f"v_and_b32 v{t3}, 3, v{t1}")
    a(f"v_lshl_add_u32 v{t2}, v{t2}, 2, v{t3}")
    a(f"v_bfe_u32 v{t1}, v{t1}, 2, 2")
    a(f"v_lshrrev_b32 v{t3}, 1, v{t1}")
    a(f"v_mul_u32_u24 v{vM}, 18, v{t3}")
    a(f"v_and_b32 v{t3}, 1, v{t1}")
    a(f"v_lshl_add_u32 v{vM}, v{t3}, 3, v{vM}")
    a(f"v_add_u32 v{vM}, v{vM}, v{t2}")
    a(f"v_mul_u32_u24 v{vM}, 1152, v{vM}")
    a(f"v_lshl_add_u32 v{vM}, v{t0}, 4, v{vM}")
    a(f"v_lshrrev_b32 v{t3}, 1, v{t2}")
    a(f"v_lshl_add_u32 v{t3}, v{t1}, 2, v{t3}")
    a(f"v_mul_u32_u24 v{vE}, 18, v{t3}")
    a(f"v_and_b32 v{t3}, 1, v{t2}")
    a(f"v_add3_u32 v{vE}, v{vE}, v{t3}, 16")
    a(f"v_mul_u32_u24 v{vE}, 1152, v{vE}")
    a(f"v_lshl_add_u32 v{vE}, v{t0}, 4, v{vE}")
    a(f"v_cmp_lt_u32 vcc, 11, v{t0}")
    a(f"v_mov_b32 v{t3}, 0x40000000")
    a(f"s_lshl_b32 s46, s{S_WAVE}, 10")
    a(f"v_cndmask_b32 v{vM}, v{vM}, v{t3}, vcc")
    a(f"v_cndmask_b32 v{vE}, v{vE}, v{t3}, vcc")
    for s in range(18):
        a(f"s_add_u32 m0, s46, {32*PW*s}")
        a(f"s_add_u32 s47, s45, {(36*s if s < 16 else 288*(s-16))*1152}")
        a(f"buffer_load_dwordx4 v{vM if s < 16 else vE}, s[{SRD_B}:{SRD_B+3}], s47 offen lds")
    a("s_branch L_p_join")
    a.label("L_p_poll")
    a("s_lshl_b32 s46, s42, 7")
    a(f"s_add_u32 s46, s46, {CNT_O + RDY:#x}")
    poll(a, SRD_WS, "s46", 1, t1, sleep=env("OSLEEP", 2))
    a.label("L_p_join")
    a(f"v_lshrrev_b32 v{t2}, 2, v0")
    a(f"v_mul_u32_u24 v{vWa0}, {PW}, v{t2}")
    a(f"v_and_b32 v{t2}, 3, v0")
    a(f"v_lshl_add_u32 v{vWa0}, v{t2}, 3, v{vWa0}")
    a(f"v_add_u32 v{vWa1}, {9*32*PW}, v{vWa0}")
    a(f"v_and_b32 v{t0}, 15, v0")
    a(f"v_lshrrev_b32 v{t1}, 4, v0")
    a(f"v_lshlrev_b32 v{vXo}, 15, v{t1}")
    a(f"v_lshl_add_u32 v{vXo}, v{t0}, 4, v{vXo}")
    a(f"v_lshlrev_b32 v{vEo}, 15, v{t1}")
    a(f"v_lshl_add_u32 v{vEo}, v{t0}, 2, v{vEo}")
    a(f"s_lshl_b32 s46, s{S_WAVE}, 4")
    a("s_add_u32 s46, s46, s44")
    a("s_lshl_b32 s47, s46, 4")
    a(f"s_add_u32 s47, s47, {WS_O8:#x}")
    a("s_lshl_b32 s48, s46, 2")
    a(f"s_add_u32 s48, s48, {WS_OEXT:#x}")
    a("s_waitcnt vmcnt(0)")
    if env('PST', 1): st.stamp(2)
    a("s_barrier")
    if env("PST", 1): st.stamp(3)
    a(f"s_cmp_ge_u32 s{S_WAVE}, 4")
    a("s_cbranch_scc1 L_end")
    for s in range(16):
        if s: a(f"s_add_u32 s47, s47, {4*32768}")
        a(f"buffer_load_dwordx4 {vr(FX[s],4)}, v{vXo}, {W}, s47 offen {LD}")
    for e in range(2):
        for jj in range(4):
            a(f"s_add_u32 s49, s48, {(16*e + jj)*8192}")
            a(f"buffer_load_dword v{FX[16+e]+jj}, v{vEo}, {W}, s49 offen {LD}")
    def reads(s):
        b = vWa1 if s >= 9 else vWa0
        so = (s % 9) * 32 * PW
        return [f"ds_read_b64_tr_b16 {vr(FW[s&1][j]+2*y,2)}, v{b} offset:{so + 16*PW*y + 32*j}" for j in range(6) for y in range(2)]
    for l in reads(0): a(l)
    for s in range(18):
        vm = (15 - s) + 8 if s < 16 else (4 if s == 16 else 0)
        a(f"s_waitcnt vmcnt({vm}) lgkmcnt(0)")
        rd = reads(s + 1) if s < 17 else []
        for j in range(6):
            c = "0" if s == 0 else vr(ACC[j], 4)
            a(f"v_mfma_f32_16x16x32_bf16 {vr(ACC[j],4)}, {vr(FW[s&1][j],4)}, {vr(FX[s],4)}, {c}")
            for _ in range(2):
                if rd: a(rd.pop(0))
    if env("PST", 1): st.stamp(4)
    a(f"s_mul_i32 s47, s{S_WAVE}, {16*208}")
    a(f"s_add_u32 s47, s47, {STG}")
    a(f"v_mul_u32_u24 v{vXo}, 208, v{t0}")
    a(f"v_lshl_add_u32 v{vXo}, v{t1}, 3, v{vXo}")
    a(f"v_add_u32 v{vXo}, s47, v{vXo}")
    a("s_mul_i32 s48, s46, 2304")
    a("s_add_u32 s48, s48, s45")
    a("s_nop 1")
    for j in range(6):
        d = FW[0][j]
        a(f"v_cvt_pk_bf16_f32 v{d}, v{ACC[j]}, v{ACC[j]+1}")
        a(f"v_cvt_pk_bf16_f32 v{d+1}, v{ACC[j]+2}, v{ACC[j]+3}")
        a(f"ds_write_b64 v{vXo}, {vr(d,2)} offset:{32*j}")
    for i in range(3):
        a(f"v_add_u32 v{t2}, {64*i}, v0")
        a(f"v_mul_u32_u24 v{t3}, 5462, v{t2}")
        a(f"v_lshrrev_b32 v{t3}, 16, v{t3}")
        a(f"v_lshlrev_b32 v{t2}, 4, v{t2}")
        a(f"v_lshl_add_u32 v{FX[i]}, v{t3}, 4, v{t2}")
        a(f"v_add_u32 v{FX[i]}, s47, v{FX[i]}")
        a(f"v_mul_u32_u24 v{t3}, {2304-192}, v{t3}")
        a(f"v_add_u32 v{FX[i]+1}, v{t2}, v{t3}")
    for idv in range(192): assert (idv * 5462) >> 16 == idv // 12
    a("s_waitcnt lgkmcnt(0)")
    for i in range(3):
        a(f"ds_read_b128 {vr(FX[4+i],4)}, v{FX[i]}")
    for i in range(3):
        a(f"s_waitcnt lgkmcnt({2-i})")
        a(f"buffer_store_dwordx4 {vr(FX[4+i],4)}, v{FX[i]+1}, s[{SRD_A}:{SRD_A+3}], s48 offen")
    return R.n
```

```python
from asmlib import Asm, Regs, vr, sr, kernel_header, kernel_desc, srd, load_kernargs, STAMP_ON
from asmlib import P_X, P_WQKV, P_WO, P_U, P_LAR, P_AIM, P_CRE, P_CIM, P_LDT, P_DSK, P_OUT, P_DBG, P_WS
import struct, math, os
def fb(x): return struct.unpack("<I", struct.pack("<f", x))[0]
def env(n, d): return int(os.environ.get(n, d))

WS_QKVT = 0
WS_O8   = 0x700000
WS_OEXT = 0x900000
WS_KEXP = 0xA00000
WS_UT8  = 0xD00000
WS_YT   = 0x1000000
WS_STAMP = 0x1300000
WS_BYTES = 0x1400000
KP = 4224

S_WAVE = 3
SRD_WS = 4
SRD_A = 8
SRD_B = 12
SRD_DBG = 96
S_PAIR = 100
S_ROUND = 101
V_PAR = 1
V0 = 8

WS_CNT = 0x12C0000
CNT_Q, CNT_O, CNT_Y = WS_CNT, WS_CNT + 16*128, WS_CNT + 24*128
RDY = 32*128
LD = "sc1"

class Stamps:
    def __init__(self, a, base=64):
        self.a, self.base = a, base
    def stamp(self, i):
        if STAMP_ON(): self.a(f"s_memtime s[{self.base+2*i}:{self.base+2*i+1}]")
    def real(self, i):
        if STAMP_ON(): self.a(f"s_memrealtime s[{self.base+2*i}:{self.base+2*i+1}]")
    def clear(self):
        if STAMP_ON():
            for i in range(16): self.a(f"s_mov_b32 s{self.base+2*i}, 0")
    def flush(self):
        if not STAMP_ON(): return
        a = self.a
        a("s_waitcnt vmcnt(0)")
        self.stamp(14); self.real(15)
        a("s_mov_b64 exec, 1")
        a("s_waitcnt lgkmcnt(0)")
        a("s_lshl_b32 s62, s2, 4")
        a(f"s_add_u32 s62, s62, s{S_WAVE}")
        a("s_lshl_b32 s62, s62, 6")
        a(f"s_add_u32 s62, s62, {WS_STAMP:#x}")
        a("v_mov_b32 v8, 0")
        for i in range(16):
            a(f"v_mov_b32 v9, s{self.base+2*i}")
            a(f"buffer_store_dword v9, v8, s[{SRD_WS}:{SRD_WS+3}], s62 offen offset:{4*i}")

_sc = [0]
def arrive(a, srd_, soff):
    a("s_mov_b64 exec, 1")
    a("v_mov_b32 v7, 1")
    a(f"buffer_atomic_add v7, off, s[{srd_}:{srd_+3}], {soff} sc0 sc1")
    a("s_mov_b64 exec, -1")
def arrive_finish(a, srd_, srdy, total, wait=True):
    _sc[0] += 1
    L = f"L_arr{_sc[0]}"
    if wait: a("s_waitcnt vmcnt(0)")
    a("v_readfirstlane_b32 s60, v7")
    a("s_nop 3")
    a(f"s_cmp_lg_u32 s60, {total - 1}")
    a(f"s_cbranch_scc1 {L}")
    a("s_mov_b64 exec, 1")
    a(f"buffer_store_dword v7, off, s[{srd_}:{srd_+3}], {srdy} sc1")
    a("s_mov_b64 exec, -1")
    a.label(L)

_pc = [0]
def poll(a, srd_, soff, expect, vtmp, sleep=8, vaddr=None, lanes=1):
    _pc[0] += 1
    L = f"L_poll{_pc[0]}"
    a("s_mov_b32 s60, 0")
    a(f"s_mov_b64 exec, {(1 << lanes) - 1}")
    a.label(L)
    if vaddr is None: a(f"buffer_load_dword v{vtmp}, off, s[{srd_}:{srd_+3}], {soff} sc1")
    else: a(f"buffer_load_dword v{vtmp}, v{vaddr}, s[{srd_}:{srd_+3}], {soff} offen sc1")
    a("s_add_u32 s60, s60, 1")
    a("s_waitcnt vmcnt(0)")
    a(f"v_cmp_gt_u32 vcc, {expect}, v{vtmp}")
    a(f"s_cbranch_vccz {L}_ok")
    a(f"s_sleep {sleep}")
    a(f"s_cmp_lt_u32 s60, {env('POLLMAX', 0x4000):#x}")
    a(f"s_cbranch_scc1 {L}")
    a.label(f"{L}_ok")
    a("s_mov_b64 exec, -1")

FLAG = 153536
def lds_wait(a, off, expect, vaddr, vtmp):
    _pc[0] += 1
    L = f"L_lw{_pc[0]}"
    a(f"v_mov_b32 v{vaddr}, {FLAG}")
    a(f"s_branch {L}_t")
    a.label(L)
    a("s_sleep 1")
    a.label(f"{L}_t")
    a(f"ds_read_b32 v{vtmp}, v{vaddr} offset:{off}")
    a("s_waitcnt lgkmcnt(0)")
    a(f"v_cmp_gt_u32 vcc, {expect}, v{vtmp}")
    a(f"s_cbranch_vccnz {L}")
def lds_inc(a, off, vaddr, vtmp):
    a("s_mov_b64 exec, 1")
    a(f"v_mov_b32 v{vaddr}, {FLAG}")
    a(f"v_mov_b32 v{vtmp}, 1")
    a(f"ds_add_u32 v{vaddr}, v{vtmp} offset:{off}")
    a("s_mov_b64 exec, -1")
```

```python
import sys
from fcommon import *
import f_gemm, f_ssm, f_attn, f_tail
NAME = "concat_heads__mha_block__ssm_conv_s4d__prompt_kernel"
HEADER = open("concat_heads__mha_block__ssm_conv_s4d__prompt.s.ref").read().split("; Override launch")[0]

def build(out, as_list):
    a = Asm()
    st = Stamps(a)
    w = S_WAVE
    a.raw('.amdgcn_target "amdgcn-amd-amdhsa--gfx950"')
    a.raw(".text")
    kernel_header(a, NAME)
    a("s_cmp_ge_u32 s2, 256")
    a("s_cbranch_scc1 L_exit")
    st.clear()
    st.real(0); st.stamp(1)
    if os.environ.get("DIAG"): a("s_memrealtime s[88:89]")
    load_kernargs(a)
    a("v_lshrrev_b32 v1, 6, v0")
    a("v_and_b32 v0, 63, v0")
    a(f"v_readfirstlane_b32 s{w}, v1")
    a("s_and_b32 s42, s2, 7")
    a("s_lshr_b32 s43, s2, 3")
    a(f"s_mul_i32 s{S_PAIR}, s42, 36")
    a(f"s_add_u32 s{S_PAIR}, s{S_PAIR}, s43")
    a(f"v_mov_b32 v8, {FLAG}")
    a("v_mov_b32 v10, 0")
    a("v_mov_b32 v11, 0")
    a("ds_write_b64 v8, v[10:11]")
    a("ds_write_b64 v8, v[10:11] offset:8")
    a("s_cmp_ge_u32 s43, 28")
    a(f"s_cselect_b32 s{S_ROUND}, 1, 0")
    a("s_cselect_b32 s44, 4, 0")
    a(f"s_add_u32 s{S_PAIR}, s{S_PAIR}, s44")
    a("s_waitcnt lgkmcnt(0)")
    srd(a, SRD_WS, P_WS, WS_BYTES)
    srd(a, SRD_DBG, P_DBG, 256)
    nv = []
    a(f"s_cmp_lg_u32 s{S_ROUND}, 0")
    a("s_cbranch_scc1 L_free")
    nv.append(f_gemm.gen_qkv(a, st))
    a("s_branch L_round")
    a.label("L_free")
    nv.append(f_gemm.gen_free(a, st))
    a.label("L_round")
    a("s_barrier")
    st.stamp(5)
    st.mark("ba")
    a.label("L_round2")
    nv.append(f_ssm.gen_kgen_tables(a, st))
    a(f"s_cmp_eq_u32 s{S_ROUND}, 0")
    a("s_cbranch_scc1 L_r_nout")
    f_gemm.ut_finish(a)
    a.label("L_r_nout")
    a("s_waitcnt lgkmcnt(0)")
    a("s_barrier")
    st.stamp(6)
    a(f"s_and_b32 s44, s{w}, 5")
    a("s_cmp_lg_u32 s44, 4")
    a("s_cbranch_scc1 L_r_nomf")
    a(f"s_bfe_u32 s44, s{w}, 0x10001")
    nv.append(f_ssm.gen_kgen_mfma(a, st))
    a.label("L_r_nomf")
    a(f"s_cmp_eq_u32 s{S_ROUND}, 0")
    a("s_cbranch_scc1 L_r_last")
    a(f"s_mov_b32 s{S_ROUND}, 0")
    a(f"s_sub_u32 s{S_PAIR}, s{S_PAIR}, 4")
    f_ssm.load_params(a, 8)
    if STAMP_ON():
        a("s_waitcnt lgkmcnt(0)")
        for dst, src in ((2, 5), (3, 6)): a(f"s_mov_b32 s{64+2*dst}, s{64+2*src}")
    a("s_waitcnt vmcnt(0)")
    a("s_barrier")
    st.stamp(5)
    a(f"s_cmp_lg_u32 s{w}, 0")
    a("s_cbranch_scc1 L_round2")
    arrive(a, SRD_DBG, "0")
    a("s_movk_i32 s58, 128")
    arrive_finish(a, SRD_DBG, "s58", 32)
    a("s_branch L_round2")
    a.label("L_r_last")
    a("s_cmp_ge_u32 s2, 224")
    a("s_cselect_b32 s59, 4, 3")
    a(f"s_cmp_ge_u32 s{w}, 4")
    a("s_cbranch_scc1 L_r_hi")
    a.c("L2 warm-up for wo: 5184 lines, 162 per WG of an XCD")
    srd(a, SRD_B, P_WO, 576*1152)
    a("s_lshr_b32 s44, s2, 3")
    a(f"s_mul_i32 s44, s44, {162*128}")
    a(f"s_mul_i32 s45, s{w}, {33*128}")
    a("s_add_u32 s44, s44, s45")
    a("v_lshlrev_b32 v8, 7, v0")
    a("s_cmp_ge_u32 s2, 224")
    a("s_cbranch_scc1 L_r_freelo")
    a.c("drain the QKV stores; the last of the four waves signals Q")
    a("s_waitcnt vmcnt(0)")
    a("s_mov_b64 exec, 1")
    a(f"v_mov_b32 v9, {FLAG}")
    a("v_mov_b32 v10, 1")
    a("ds_add_rtn_u32 v11, v9, v10")
    a("s_and_b32 s58, s2, 7")
    a("s_lshr_b32 s58, s58, 2")
    a("s_mul_i32 s58, s58, 7")
    a("s_lshr_b32 s57, s2, 5")
    a("s_add_u32 s58, s58, s57")
    a("s_lshl_b32 s58, s58, 7")
    a(f"s_add_u32 s58, s58, {CNT_Q:#x}")
    a("s_waitcnt lgkmcnt(0)")
    a("v_cmp_eq_u32 vcc, 3, v11")
    a("s_mov_b64 exec, -1")
    a("s_cbranch_vccz L_r_nosig")
    arrive(a, SRD_WS, "s58")
    a(f"s_add_u32 s58, s58, {RDY}")
    arrive_finish(a, SRD_WS, "s58", 16)
    a.label("L_r_nosig")
    a(f"buffer_load_dword v6, v8, s[{SRD_B}:{SRD_B+3}], s44 offen")
    st.stamp(7)
    a.label("L_r_pre")
    nv.append(f_attn.gen_preload(a, st))
    st.stamp(13)
    a("s_cmp_ge_u32 s2, 224")
    a("s_cbranch_scc1 L_attn")
    a("s_barrier")
    a("s_branch L_attn")
    a.label("L_r_freelo")
    a(f"buffer_load_dword v6, v8, s[{SRD_B}:{SRD_B+3}], s44 offen")
    a(f"s_add_u32 s{S_PAIR}, s{S_PAIR}, 4")
    a("s_branch L_r_bc")
    a.label("L_r_hi")
    a(f"s_bitcmp0_b32 s{w}, 0")
    a("s_cbranch_scc1 L_r_inc")
    a("s_cmp_ge_u32 s2, 224")
    a("s_cbranch_scc1 L_r_fg")
    a(f"s_cmp_eq_u32 s{w}, 7")
    a("s_cbranch_scc1 L_r_bc")
    a("s_branch L_r_uw")
    a.label("L_r_fg")
    a(f"s_cmp_eq_u32 s{w}, 7")
    a("s_cbranch_scc1 L_r_fg7")
    f_ssm.gen_ugather(a, st, f_ssm.UB, 0)
    a("s_branch L_r_uw")
    a.label("L_r_fg7")
    f_ssm.gen_ugather(a, st, f_ssm.UB2, 4)
    a.label("L_r_uw")
    a("s_waitcnt vmcnt(0) lgkmcnt(0)")
    a.label("L_r_inc")
    lds_inc(a, 8, 8, 9)
    a.label("L_r_bc")
    st.stamp(7)
    lds_wait(a, 8, "s59", 8, 9)
    st.stamp(8)
    nv.append(f_ssm.gen_conv_main(a, st))
    a("s_cmp_lt_u32 s2, 224")
    a("s_cbranch_scc1 L_attn")
    a("s_barrier")
    a(f"s_cmp_lt_u32 s{w}, 4")
    a("s_cbranch_scc1 L_r_pre")
    a.label("L_attn")
    n, fallback = f_attn.gen_attn(a, st); nv.append(n)
    a("s_waitcnt vmcnt(0)")
    a("s_barrier")
    st.mark("bo")
    a("s_and_b32 s42, s2, 7")
    a("s_lshr_b32 s43, s2, 3")
    a(f"s_cmp_lg_u32 s{w}, 7")
    a("s_cbranch_scc1 L_o_nosig")
    a("s_lshr_b32 s58, s2, 5")
    a("s_lshl_b32 s58, s58, 7")
    a(f"s_add_u32 s58, s58, {CNT_O:#x}")
    arrive(a, SRD_WS, "s58")
    a(f"s_add_u32 s58, s58, {RDY}")
    arrive_finish(a, SRD_WS, "s58", 32)
    a.label("L_o_nosig")
    a("s_cmp_ge_u32 s43, 24")
    a("s_cbranch_scc1 L_ytrans")
    nv.append(f_tail.gen_proj(a, st))
    a("s_branch L_end")
    a.label("L_ytrans")
    nv.append(f_tail.gen_ytrans(a, st))
    a.label("L_end")
    st.flush()
    a.label("L_exit")
    a("s_endpgm")
    fallback()
    print("vgprs", nv, file=sys.stderr)
    if as_list: launch = f"; @launch kernel={NAME} grid=(256,1,1) block=(512,1,1) lds={f_attn.LDS_TOTAL}"
    else: launch = f"; @launch grid=(256,1,1) block=(512,1,1) lds={f_attn.LDS_TOTAL}"
    txt = HEADER + launch + "\n" + a.text() + '.section .rodata,"a"\n' + kernel_desc(NAME, max(nv), 102)
    open(out, "w").write(txt)

if __name__ == "__main__":
    build(sys.argv[1], len(sys.argv) > 2)
```

```python
from asmlib import Asm, Regs, vr, sr, kernel_header, kernel_desc, srd, load_kernargs, STAMP_ON
from asmlib import P_X, P_WQKV, P_WO, P_U, P_LAR, P_AIM, P_CRE, P_CIM, P_LDT, P_DSK, P_OUT, P_DBG, P_WS
import struct, math, os
def fb(x): return struct.unpack("<I", struct.pack("<f", x))[0]
def env(n, d): return int(os.environ.get(n, d))

WS_QKVT = 0
WS_O8   = 0x700000
WS_OEXT = 0x900000
WS_KEXP = 0xA00000
WS_UT8  = 0xD00000
WS_YT   = 0x1000000
WS_STAMP = 0x1300000
WS_BYTES = 0x1400000
KP = 4224

S_WAVE = 3
SRD_WS = 4
SRD_A = 8
SRD_B = 12
SRD_DBG = 96
S_PAIR = 100
S_ROUND = 101
V_PAR = 1
V0 = 8

WS_CNT = 0x12C0000
CNT_Q, CNT_O, CNT_Y = WS_CNT, WS_CNT + 16*128, WS_CNT + 24*128
RDY = 32*128
LD = "sc1"

class Stamps:
    def __init__(self, a, base=64):
        self.a, self.base = a, base
    def stamp(self, i):
        if STAMP_ON(): self.a(f"s_memtime s[{self.base+2*i}:{self.base+2*i+1}]")
    def real(self, i):
        if STAMP_ON(): self.a(f"s_memrealtime s[{self.base+2*i}:{self.base+2*i+1}]")
    def clear(self):
        if STAMP_ON():
            for i in range(16): self.a(f"s_mov_b32 s{self.base+2*i}, 0")
    def mark(self, name):
        if os.environ.get("DIAG") == name: self.a("s_memrealtime s[90:91]")
    def flush(self):
        a = self.a
        d = os.environ.get("DIAG")
        if d:
            a("s_waitcnt vmcnt(0) lgkmcnt(0)")
            if d == "fix": a("s_add_u32 s92, s88, 6000")
            else:
                a("s_memrealtime s[92:93]")
                a("s_waitcnt lgkmcnt(0)")
                a("s_sub_u32 s90, s90, s88")
                a("s_add_u32 s92, s92, s90")
            a.label("L_diag")
            a("s_memrealtime s[94:95]")
            a("s_waitcnt lgkmcnt(0)")
            a("s_sub_u32 s94, s94, s92")
            a("s_cmp_lt_i32 s94, 0")
            a("s_cbranch_scc1 L_diag")
        if not STAMP_ON(): return
        a("s_waitcnt vmcnt(0)")
        self.stamp(14); self.real(15)
        a("s_mov_b64 exec, 1")
        a("s_waitcnt lgkmcnt(0)")
        a("s_lshl_b32 s62, s2, 4")
        a(f"s_add_u32 s62, s62, s{S_WAVE}")
        a("s_lshl_b32 s62, s62, 6")
        a(f"s_add_u32 s62, s62, {WS_STAMP:#x}")
        a("v_mov_b32 v8, 0")
        for i in range(16):
            a(f"v_mov_b32 v9, s{self.base+2*i}")
            a(f"buffer_store_dword v9, v8, s[{SRD_WS}:{SRD_WS+3}], s62 offen offset:{4*i}")

_sc = [0]
def arrive(a, srd_, soff):
    a("s_mov_b64 exec, 1")
    a("v_mov_b32 v7, 1")
    a(f"buffer_atomic_add v7, off, s[{srd_}:{srd_+3}], {soff} sc0 sc1")
    a("s_mov_b64 exec, -1")
def arrive_finish(a, srd_, srdy, total, wait=True):
    _sc[0] += 1
    L = f"L_arr{_sc[0]}"
    if wait: a("s_waitcnt vmcnt(0)")
    a("v_readfirstlane_b32 s60, v7")
    a("s_nop 3")
    a(f"s_cmp_lg_u32 s60, {total - 1}")
    a(f"s_cbranch_scc1 {L}")
    a("s_mov_b64 exec, 1")
    a(f"buffer_store_dword v7, off, s[{srd_}:{srd_+3}], {srdy} sc1")
    a("s_mov_b64 exec, -1")
    a.label(L)

_pc = [0]
def poll(a, srd_, soff, expect, vtmp, sleep=8, vaddr=None, lanes=1):
    _pc[0] += 1
    L = f"L_poll{_pc[0]}"
    a("s_mov_b32 s60, 0")
    a(f"s_mov_b64 exec, {(1 << lanes) - 1}")
    a.label(L)
    if vaddr is None: a(f"buffer_load_dword v{vtmp}, off, s[{srd_}:{srd_+3}], {soff} sc1")
    else: a(f"buffer_load_dword v{vtmp}, v{vaddr}, s[{srd_}:{srd_+3}], {soff} offen sc1")
    a("s_add_u32 s60, s60, 1")
    a("s_waitcnt vmcnt(0)")
    a(f"v_cmp_gt_u32 vcc, {expect}, v{vtmp}")
    a(f"s_cbranch_vccz {L}_ok")
    a(f"s_sleep {sleep}")
    a(f"s_cmp_lt_u32 s60, {env('POLLMAX', 0x4000):#x}")
    a(f"s_cbranch_scc1 {L}")
    a.label(f"{L}_ok")
    a("s_mov_b64 exec, -1")

FLAG = 153536
def lds_wait(a, off, expect, vaddr, vtmp):
    _pc[0] += 1
    L = f"L_lw{_pc[0]}"
    a(f"v_mov_b32 v{vaddr}, {FLAG}")
    a(f"s_branch {L}_t")
    a.label(L)
    a("s_sleep 1")
    a.label(f"{L}_t")
    a(f"ds_read_b32 v{vtmp}, v{vaddr} offset:{off}")
    a("s_waitcnt lgkmcnt(0)")
    a(f"v_cmp_gt_u32 vcc, {expect}, v{vtmp}")
    a(f"s_cbranch_vccnz {L}")
def lds_inc(a, off, vaddr, vtmp):
    a("s_mov_b64 exec, 1")
    a(f"v_mov_b32 v{vaddr}, {FLAG}")
    a(f"v_mov_b32 v{vtmp}, 1")
    a(f"ds_add_u32 v{vaddr}, v{vtmp} offset:{off}")
    a("s_mov_b64 exec, -1")
```

```python
from fcommon import *
CHK = 38400
PK, PV = 1088, 1040
VO, KO = 32, 18816
QB = 4 * CHK
ONES = QB + 8 * 1152
LDS_TOTAL = ONES + 1024
OOB = 0x30000
assert LDS_TOTAL == 163840

VA = 176
vKa, vEa, vVa, vIdx, vD, vEi, vVi, vQa, vQe = [VA + i for i in range(9)]
vO = 192
vPM, vPE, vOm, vOe = 185, 186, 187, 188
PREG = [112 + 4*i for i in range(16)] + [216, 220]
vNEG = 212
S_OM, S_OE = 0, 1
S_PN, S_PB, S_PS = 61, 62, 63

def head_ids(a):
    a("s_and_b32 s44, s2, 7")
    a("s_lshl_b32 s44, s44, 2")
    a("s_bfe_u32 s45, s2, 0x20003")
    a("s_add_u32 s44, s44, s45")
    a("s_lshr_b32 s45, s2, 5")
    a("s_mul_i32 s46, s44, 0x12000")
    a(f"s_add_u32 s47, s46, {576*4096:#x}")
    a(f"s_add_u32 s48, s46, {1152*4096:#x}")

def attn_hoist(a, vt0, vt1, vt2, vt3):
    vlane, w = 0, S_WAVE
    a(f"v_lshlrev_b32 v{vD}, 4, v0")
    a(f"v_lshrrev_b32 v{vt3}, 5, v{vlane}")
    a(f"v_bfe_u32 v{vt0}, v{vlane}, 2, 2")
    a(f"v_and_b32 v{vt1}, 3, v{vlane}")
    a(f"v_lshlrev_b32 v{vt1}, 3, v{vt1}")
    a(f"v_and_b32 v{vt2}, 16, v{vlane}")
    a(f"v_lshl_add_u32 v{vt1}, v{vt2}, 1, v{vt1}")
    a(f"v_lshl_add_u32 v{vt2}, v{vt3}, 3, v{vt0}")
    a(f"v_mul_u32_u24 v{vKa}, {PK}, v{vt2}")
    a(f"v_add_u32 v{vKa}, v{vKa}, v{vt1}")
    a(f"v_add_u32 v{vKa}, {KO}, v{vKa}")
    a(f"s_mul_i32 s56, s{w}, 1152")
    a(f"s_add_u32 s56, s56, {QB}")
    a(f"v_lshl_add_u32 v{vQa}, v{vt2}, 6, v{vt1}")
    a(f"v_add_u32 v{vQa}, s56, v{vQa}")
    a(f"v_and_b32 v{vQe}, 1, v{vt0}")
    a(f"v_lshl_add_u32 v{vQe}, v{vQe}, 6, v{vt1}")
    a(f"v_add_u32 v{vQe}, s56, v{vQe}")
    a(f"v_mul_u32_u24 v{vEa}, {PK}, v{vt0}")
    a(f"v_add_u32 v{vEa}, {KO + 16*PK}, v{vEa}")
    a(f"v_cmp_lt_u32 vcc, 1, v{vt0}")
    a(f"v_mov_b32 v{vt2}, {ONES}")
    a(f"v_mov_b32 v{vEi}, {CHK}")
    a(f"v_lshl_add_u32 v{vt1}, v{vt3}, 6, v{vt1}")
    a(f"v_cndmask_b32 v{vEa}, v{vEa}, v{vt2}, vcc")
    a(f"v_cndmask_b32 v{vEi}, v{vEi}, 0, vcc")
    a(f"v_add_u32 v{vEa}, v{vEa}, v{vt1}")
    a(f"v_and_b32 v{vt0}, 31, v{vlane}")
    a(f"v_and_b32 v{vt1}, 0x13, v{vt0}")
    a(f"v_and_b32 v{vVi}, 4, v{vt0}")
    a(f"v_lshl_add_u32 v{vt1}, v{vVi}, 1, v{vt1}")
    a(f"v_and_b32 v{vVi}, 8, v{vt0}")
    a(f"v_lshrrev_b32 v{vVi}, 1, v{vVi}")
    a(f"v_add_u32 v{vt1}, v{vt1}, v{vVi}")
    a(f"v_cmp_eq_u32 vcc, 18, v{vt0}")
    a(f"v_mul_u32_u24 v{vVa}, {PV}, v{vt1}")
    a(f"v_add_u32 v{vVa}, {VO}, v{vVa}")
    a(f"v_mov_b32 v{vVi}, {CHK}")
    a(f"v_cndmask_b32 v{vVa}, v{vVa}, v{vt2}, vcc")
    a(f"v_cndmask_b32 v{vVi}, v{vVi}, 0, vcc")
    a(f"v_cmp_lt_u32 vcc, 18, v{vt0}")
    a(f"v_lshl_add_u32 v{vVa}, v{vt3}, 4, v{vVa}")
    a(f"v_mov_b32 v{vt2}, {OOB}")
    a(f"v_cndmask_b32 v{vVa}, v{vVa}, v{vt2}, vcc")
    a(f"v_lshlrev_b32 v{vOm}, 15, v{vt3}")
    a(f"v_lshl_add_u32 v{vOm}, v{vt0}, 4, v{vOm}")
    a(f"v_lshlrev_b32 v{vOe}, 2, v{vt0}")
    for i in range(4): a(f"v_mov_b32 v{vNEG+i}, -1")
    a(f"v_mov_b32 v{vIdx}, 0xdddddddd")
    for i in range(16):
        a(f"v_mov_b32 v{vO+i}, 0")
    import f_tail
    f_tail.tail_hoist(a, vt0, vt1, vt2, vt3)

def gen_preload(a, st):
    R = Regs(V0)
    t0, t1, t2, t3 = [R.alloc() for _ in range(4)]
    vQs = R.alloc()
    o = R.alloc(2)
    head_ids(a)
    a(f"s_mov_b32 s49, s{S_WAVE}")
    a(f"v_lshrrev_b32 v{vQs}, 2, v0")
    a(f"v_lshlrev_b32 v{vQs}, 12, v{vQs}")
    a(f"v_and_b32 v{t1}, 3, v0")
    a(f"v_lshl_add_u32 v{vQs}, v{t1}, 4, v{vQs}")
    a(f"v_mov_b32 v{o}, 0x3f803f80")
    a("s_lshl_b32 s50, s49, 8")
    a(f"s_add_u32 s50, s50, {ONES}")
    a(f"v_lshlrev_b32 v{t0}, 2, v0")
    a(f"v_add_u32 v{t0}, s50, v{t0}")
    a(f"ds_write_b32 v{t0}, v{o}")
    a(f"v_mov_b32 v{t3}, {FLAG}")
    a(f"s_cmp_lg_u32 s{S_WAVE}, 3")
    a("s_cbranch_scc1 L_pre_spin")
    a(f"v_lshrrev_b32 v{t0}, 1, v0")
    a(f"v_mul_u32_u24 v{t0}, 576, v{t0}")
    a(f"v_and_b32 v{t1}, 1, v0")
    a(f"v_mul_u32_u24 v{t1}, 17, v{t1}")
    a("s_mul_i32 s50, s44, 18")
    a(f"v_add3_u32 v{t0}, v{t0}, v{t1}, s50")
    a(f"v_and_b32 v{t0}, 0xffffff80, v{t0}")
    a("s_cmp_ge_u32 s2, 224")
    a("s_cbranch_scc1 L_pre_init")
    lds_wait(a, 16, 1, t3, t2)
    a.label("L_pre_init")
    a(f"s_mov_b32 s50, {CNT_Q + RDY:#x}")
    if env("QDELAY", 0): a(f"s_sleep {env('QDELAY', 0)}")
    poll(a, SRD_WS, "s50", 1, t2, sleep=env("QSLEEP", 4), vaddr=t0, lanes=6)
    a(f"ds_write_b32 v{t3}, v{o} offset:4")
    a("s_branch L_pre_go")
    a.label("L_pre_spin")
    a("s_sleep 2")
    a(f"ds_read_b32 v{t2}, v{t3} offset:4")
    a("s_waitcnt lgkmcnt(0)")
    a(f"v_cmp_eq_u32 vcc, 0, v{t2}")
    a("s_cbranch_vccnz L_pre_spin")
    a.label("L_pre_go")
    lds_wait(a, 8, "s59", t3, t2)
    st.stamp(9)
    st.mark("go")
    W = f"s[{SRD_WS}:{SRD_WS+3}]"
    a("s_lshl_b32 s50, s49, 12")
    a("s_add_u32 s51, s47, s50")
    a(f"s_mul_i32 s52, s49, {PK}")
    for j in range(4):
        a(f"s_add_u32 m0, s52, {KO + 4*j*PK}")
        if j: a("s_add_u32 s51, s51, 0x4000")
        else: a("s_nop 0")
        a(f"buffer_load_dwordx4 v{vD}, {W}, s51 offen {LD} lds")
    a("s_and_b32 s53, s49, 1")
    a("s_bitcmp1_b32 s49, 1")
    a("s_cselect_b32 s51, s48, s47")
    a(f"s_mov_b32 s54, {KO + 16*PK}")
    a(f"s_mov_b32 s55, {PK}")
    a(f"s_cselect_b32 s54, {VO + 16*PV}, s54")
    a(f"s_cselect_b32 s55, {PV}, s55")
    a("s_mul_i32 s55, s55, s53")
    a("s_add_u32 s54, s54, s55")
    a("s_lshl_b32 s53, s53, 12")
    a("s_add_u32 s51, s51, s53")
    a("s_mov_b32 m0, s54")
    a("s_add_u32 s51, s51, 0x10000")
    a(f"buffer_load_dwordx4 v{vD}, {W}, s51 offen {LD} lds")
    a("s_lshl_b32 s53, s45, 9")
    a("s_add_u32 s53, s53, s46")
    a("s_lshl_b32 s55, s49, 7")
    a("s_add_u32 s53, s53, s55")
    a("s_mul_i32 s55, s49, 2304")
    for j in range(2):
        a(f"s_add_u32 m0, s55, {QB + 1152*j}")
        a(f"s_add_u32 s56, s53, {64*j}")
        a(f"buffer_load_dwordx4 v{vQs}, {W}, s56 offen {LD} lds")
    a("s_mov_b64 exec, 0xff")
    for j in range(2):
        a(f"s_add_u32 m0, s55, {QB + 1152*j + 1024}")
        a(f"s_add_u32 s56, s53, {64*j + 0x10000}")
        a(f"buffer_load_dwordx4 v{vQs}, {W}, s56 offen {LD} lds")
    a("s_mov_b64 exec, -1")
    a("s_add_u32 s56, s48, s50")
    a(f"s_mul_i32 s52, s49, {PV}")
    for j in range(4):
        a(f"s_add_u32 m0, s52, {VO + 4*j*PV}")
        if j: a("s_add_u32 s56, s56, 0x4000")
        else: a("s_nop 0")
        a(f"buffer_load_dwordx4 v{vD}, {W}, s56 offen {LD} lds")
    a(f"s_add_u32 m0, s54, {CHK}")
    a("s_add_u32 s51, s51, 1024")
    a(f"buffer_load_dwordx4 v{vD}, {W}, s51 offen {LD} lds")
    return R.n

def gen_attn(a, st, tail_setup):
    prio_n, bar_lo, bar_hi = env("PRIO_N", 45), env("BAR_LO", 5), env("BAR_HI", 12)
    W = f"s[{SRD_WS}:{SRD_WS+3}]"
    R = Regs(V0)
    vt0, vt1, vt2, vt3 = [R.alloc() for _ in range(4)]
    vQ = R.alloc(4, 4)
    vQA = R.alloc(2); vQB = R.alloc(2)
    vKM = [R.alloc(4, 4) for _ in range(2)]
    vKE = [R.alloc(2) for _ in range(2)]
    vV0 = [R.alloc(4, 4) for _ in range(2)]
    vV1 = [R.alloc(4, 4) for _ in range(2)]
    vS = [R.alloc(16, 4) for _ in range(4)]
    vlane = 0
    w = S_WAVE
    head_ids(a)
    a(f"s_lshl_b32 s49, s{w}, 12")
    a("s_add_u32 s50, s47, s49")
    a("s_add_u32 s51, s48, s49")
    a(f"s_mul_i32 s52, s{w}, {PK}")
    a(f"s_mul_i32 s53, s{w}, {PV}")
    a(f"s_and_b32 s56, s{w}, 1")
    a(f"s_bitcmp1_b32 s{w}, 1")
    a("s_cselect_b32 s54, s48, s47")
    a(f"s_mov_b32 s55, {KO + 16*PK + 2*CHK}")
    a(f"s_mov_b32 s57, {PK}")
    a(f"s_cselect_b32 s55, {VO + 16*PV + 2*CHK}, s55")
    a(f"s_cselect_b32 s57, {PV}, s57")
    a("s_mul_i32 s57, s57, s56")
    a("s_add_u32 s55, s55, s57")
    a("s_lshl_b32 s56, s56, 12")
    a("s_add_u32 s54, s54, s56")
    a(f"s_lshr_b32 s56, s{w}, 2")
    a(f"s_mul_i32 s57, s56, {CHK}")
    a("s_add_u32 s55, s55, s57")
    a("s_lshl_b32 s56, s56, 10")
    a("s_add_u32 s54, s54, s56")
    a(f"s_add_u32 s54, s54, {0x10000 + 2048}")
    a("s_lshl_b32 s49, s45, 8")
    a(f"s_lshl_b32 s56, s{w}, 5")
    a("s_add_u32 s49, s49, s56")
    a(f"s_lshl_b32 s{S_OM}, s44, 16")
    a("s_lshl_b32 s56, s49, 4")
    a(f"s_add_u32 s{S_OM}, s{S_OM}, s56")
    a(f"s_add_u32 s{S_OM}, s{S_OM}, {WS_O8:#x}")
    a(f"s_lshl_b32 s{S_OE}, s44, 13")
    a("s_lshl_b32 s56, s49, 2")
    a(f"s_add_u32 s{S_OE}, s{S_OE}, s56")
    a(f"s_add_u32 s{S_OE}, s{S_OE}, {WS_OEXT:#x}")
    later = []
    for c in (1, 2, 3):
        if c == 2: later.append((55, 0, 54, 0))
        for hi in range(2):
            later.append((52, KO + c*CHK + 8*hi*PK, 50, 1024*c + 0x8000*hi))
            later.append((53, VO + c*CHK + 8*hi*PV, 51, 1024*c + 0x8000*hi))
    def dma(mb, mo, sb, so):
        a(f"s_add_u32 m0, s{mb}, {mo}")
        a(f"s_add_u32 s58, s{sb}, {so}")
        a(f"buffer_load_dwordx4 v{vD}, {W}, s58 offen {LD} lds")
    a(f"v_cmp_gt_u32 s[42:43], 32, v{vlane}")
    a(f"s_cmp_lt_u32 s{w}, 4")
    a("s_cbranch_scc1 L_a_old")
    a("s_setprio 1")
    a("s_branch L_a_go")
    a.label("L_a_old")
    a("s_waitcnt vmcnt(0)")
    a.label("L_a_go")
    a("s_waitcnt lgkmcnt(0)")
    st.stamp(10)
    a("s_barrier")
    st.stamp(11)
    st.mark('attn')

    def ldK(t):
        if t and t % 16 == 0: a(f"v_add_u32 v{vKa}, {CHK}, v{vKa}")
        r = vKM[t & 1]
        a(f"ds_read_b64_tr_b16 {vr(r,2)}, v{vKa} offset:{64*(t&15)}")
        a(f"ds_read_b64_tr_b16 {vr(r+2,2)}, v{vKa} offset:{4*PK + 64*(t&15)}")
    def ldE(p):
        if p and p % 8 == 0: a(f"v_add_u32 v{vEa}, v{vEa}, v{vEi}")
        a(f"ds_read_b64_tr_b16 {vr(vKE[p&1],2)}, v{vEa} offset:{128*(p&7)}")
    def ldV(t):
        if t and t % 16 == 0: a(f"v_add_u32 v{vVa}, v{vVa}, v{vVi}")
        a(f"ds_read_b128 {vr(vV1[t&1],4)}, v{vVa} offset:{64*(t&15)+32}")
        a(f"ds_read_b128 {vr(vV0[t&1],4)}, v{vVa} offset:{64*(t&15)}")
    def QKe(t, S=None):
        S = vS[t & 3] if S is None else S
        q = vQB if t & 1 else vQA
        a(f"v_mfma_f32_32x32x8_bf16 {vr(S,16)}, {vr(vKE[(t>>1)&1],2)}, {vr(q,2)}, 0")
    def QKm(t, S=None):
        S = vS[t & 3] if S is None else S
        a(f"v_mfma_f32_32x32x16_bf16 {vr(S,16)}, {vr(vKM[t&1],4)}, {vr(vQ,4)}, {vr(S,16)}")
    def PV1(t): a(f"v_smfmac_f32_32x32x32_bf16 {vr(vO,16)}, {vr(vV0[t&1],4)}, {vr(vS[t&3],8)}, v{vIdx}")
    def PV2(t): a(f"v_smfmac_f32_32x32x32_bf16 {vr(vO,16)}, {vr(vV1[t&1],4)}, {vr(vS[t&3]+8,8)}, v{vIdx}")
    def EXP(t, lo, hi):
        for i in range(lo, hi):
            a(f"v_exp_f32 v{vS[t&3]+i}, v{vS[t&3]+i}")
    def maxtree(dst, S, n, first):
        i = 0
        if first:
            a(f"v_max3_f32 v{dst}, v{S}, v{S+1}, v{S+2}"); i = 3
        while i + 1 < n:
            a(f"v_max3_f32 v{dst}, v{dst}, v{S+i}, v{S+i+1}"); i += 2
        if i < n:
            a(f"v_max_f32 v{dst}, v{dst}, v{S+i}")
    def xhalf_max(m, tmp):
        a(f"v_mov_b32 v{tmp}, v{m}")
        a("s_nop 1")
        a(f"v_permlane32_swap_b32 v{m}, v{tmp}")
        a("s_nop 1")
        a(f"v_max_f32 v{m}, v{m}, v{tmp}")

    a.c("first tile: shift estimate = max over keys 0..31")
    a(f"ds_read_b64_tr_b16 {vr(vQA,2)}, v{vQe} offset:1024")
    a(f"ds_read_b64_tr_b16 {vr(vQ,2)}, v{vQa}")
    a(f"ds_read_b64_tr_b16 {vr(vQ+2,2)}, v{vQa} offset:256")
    ldE(0); ldK(0); ldK(1); ldE(1); ldV(0)
    a("s_waitcnt lgkmcnt(10)")
    a(f"v_cndmask_b32 v{vQB}, v{vQA}, 0, s[42:43]")
    a(f"v_cndmask_b32 v{vQA}, 0, v{vQA}, s[42:43]")
    a(f"v_mov_b32 v{vQA+1}, 0")
    a(f"v_mov_b32 v{vQB+1}, 0")
    a("s_waitcnt lgkmcnt(5)")
    QKe(0, vS[2]); QKm(0, vS[2])
    for _ in range(4): dma(*later.pop(0))
    maxtree(vt0, vS[2], 16, True)
    xhalf_max(vt0, vt1)
    a(f"v_cvt_pk_bf16_f32 v{vt0}, -v{vt0}, 0")
    a(f"v_cndmask_b32 v{vQA+1}, 0, v{vt0}, s[42:43]")
    a(f"v_cndmask_b32 v{vQB+1}, v{vt0}, 0, s[42:43]")
    a("s_waitcnt lgkmcnt(0)")
    QKe(0); QKm(0)
    ldK(2)
    QKe(1); QKm(1)
    for _ in range(3): dma(*later.pop(0))
    NT = 64
    PT0 = env('PT0', 42)
    for t in range(NT):
        a.c(f"tile {t}")
        if t in (bar_lo, bar_hi):
            assert not later
            a(f"s_cmp_lt_u32 s{w}, 4")
            a(f"s_cbranch_scc{0 if t == bar_lo else 1} L_a_nobar{t}")
            a("s_waitcnt vmcnt(0)")
            a("s_barrier")
            if t == bar_lo:
                a(f"s_cmp_lg_u32 s{w}, 0")
                a(f"s_cbranch_scc1 L_a_nobar{t}")
                a(f"s_mov_b32 s58, {CNT_Y:#x}")
                arrive(a, SRD_WS, "s58")
            a.label(f"L_a_nobar{t}")
        if t == 3:
            a.c("mark this wave's O slots as not yet written")
            a(f"buffer_store_dwordx4 {vr(vNEG,4)}, v{vOm}, {W}, s{S_OM} offen sc1")
            a("s_mov_b64 exec, s[42:43]")
            a(f"buffer_store_dword v{vNEG}, v{vOe}, {W}, s{S_OE} offen sc1")
            a("s_mov_b64 exec, -1")
        if t == PT0 - 6: tail_setup(a)
        if t == PT0 - 3:
            a(f"s_mov_b32 s58, {CNT_Y + RDY:#x}")
            a("s_mov_b64 exec, 1")
            a(f"buffer_load_dword v{vt0}, off, {W}, s58 sc1")
            a("s_mov_b64 exec, -1")
        if t == PT0:
            a.c("every workgroup has stored y and its O markers")
            a("s_waitcnt vmcnt(0)")
            a(f"v_readfirstlane_b32 s57, v{vt0}")
            a("s_nop 3")
            a("s_cmp_lg_u32 s57, 0")
            a("s_cbranch_scc1 L_a_yok")
            poll(a, SRD_WS, "s58", 1, vt0)
            a.label("L_a_yok")
        if PT0 <= t < PT0 + 18:
            i = t - PT0
            if i == 8: a(f"s_mov_b32 s{SRD_B+2}, s{S_PN}")
            if i == 16: a(f"s_sub_u32 s{S_PB}, s{S_PB}, {16*36*1152}")
            if i == 17: a(f"s_add_u32 s{S_PB}, s{S_PB}, {(288 - 36)*1152}")
            a(f"buffer_load_dwordx4 {vr(PREG[i],4)}, v{vPM if i < 16 else vPE}, s[{SRD_B}:{SRD_B+3}], s{S_PB} offen {LD}")
            a(f"s_add_u32 s{S_PB}, s{S_PB}, s{S_PS}")
        if t == bar_lo + 3:
            a(f"s_cmp_lg_u32 s{w}, 0")
            a("s_cbranch_scc1 L_a_noy")
            a(f"s_mov_b32 s58, {CNT_Y + RDY:#x}")
            arrive_finish(a, SRD_WS, "s58", 256)
            a.label("L_a_noy")
        if t == prio_n:
            a("s_setprio 0")
        a("s_waitcnt lgkmcnt(0)")
        EXP(t, 0, 2)
        if t > 0: PV2(t-1)
        if t + 1 < NT: ldV(t+1)
        EXP(t, 2, 6)
        if t + 2 < NT: QKe(t+2)
        if t + 3 < NT: ldK(t+3)
        if later: dma(*later.pop(0))
        EXP(t, 6, 10)
        if t + 2 < NT: QKm(t+2)
        if (t & 1) and (t + 3) < NT: ldE((t+3)//2)
        if later: dma(*later.pop(0))
        EXP(t, 10, 14)
        PV1(t)
        EXP(t, 14, 16)
    a("s_nop 1")
    PV2(NT-1)
    a("s_nop 9")
    a("s_mov_b32 s52, 0x2b800000")
    a("s_mov_b32 s53, 0x5d800000")
    st.stamp(12)
    st.mark('aend')
    vL = vt2
    def bcast_l():
        a(f"v_mov_b32 v{vL}, v{vO+10}")
        a(f"v_mov_b32 v{vt3}, v{vO+10}")
        a("s_nop 1")
        a(f"v_permlane32_swap_b32 v{vL}, v{vt3}")
        a("s_nop 1")
    a.c("safety check of the shift estimate")
    bcast_l()
    a(f"v_mov_b32 v{vt0}, v{vL}")
    for i in range(10):
        a(f"v_fma_f32 v{vt0}, v{vO+i}, 0, v{vt0}")
    a(f"v_cmp_nle_f32 s[54:55], s52, v{vt0}")
    a(f"v_cmp_nge_f32 vcc, s53, v{vt0}")
    a("s_or_b64 vcc, vcc, s[54:55]")
    a("s_cbranch_vccnz L_a_fallback")
    a.label("L_a_store")
    a(f"v_rcp_f32 v{vt0}, v{vL}")
    a("s_nop 0")
    for i in range(10):
        a(f"v_mul_f32 v{vO+i}, v{vO+i}, v{vt0}")
    for j in range(4):
        a(f"v_cvt_pk_bf16_f32 v{vQ+j}, v{vO+2*j}, v{vO+2*j+1}")
    a(f"v_cvt_pk_bf16_f32 v{vt0}, v{vO+8}, v{vO+9}")
    for r in (vQ, vQ+1, vQ+2, vQ+3, vt0):
        a(f"v_min_u32 v{r}, -2, v{r}")
    a(f"buffer_store_dwordx4 {vr(vQ,4)}, v{vOm}, {W}, s{S_OM} offen sc1")
    a("s_mov_b64 exec, s[42:43]")
    a(f"buffer_store_dword v{vt0}, v{vOe}, {W}, s{S_OE} offen sc1")
    a("s_mov_b64 exec, -1")
    assert R.n <= 112

    def fallback():
        a.label("L_a_fallback")
        a.c("exact path: true row max, then a second sweep")
        a(f"v_mov_b32 v{vQA+1}, 0")
        a(f"v_mov_b32 v{vQB+1}, 0")
        a(f"v_mov_b32 v{vt0}, 0xff800000")
        def rewind(n):
            a(f"v_subrev_u32 v{vKa}, {n*CHK}, v{vKa}")
            for _ in range(n):
                a(f"v_sub_u32 v{vEa}, v{vEa}, v{vEi}")
                a(f"v_sub_u32 v{vVa}, v{vVa}, v{vVi}")
        rewind(3)
        for ps in range(2):
            a("s_mov_b32 s56, 0")
            a.label(f"L_a_fb{ps}")
            ldE(0); ldK(0); ldK(1)
            if ps:
                ldV(0); ldV(1)
            a("s_waitcnt lgkmcnt(0)")
            QKe(0); QKm(0); QKe(1); QKm(1)
            a("s_nop 15")
            for r in (vKa, vEa, vVa):
                a(f"v_add_u32 v{r}, 128, v{r}")
            a("s_add_u32 s56, s56, 1")
            a("s_and_b32 s57, s56, 7")
            a(f"s_cbranch_scc1 L_a_fb{ps}_same")
            a(f"v_add_u32 v{vKa}, {CHK - 1024}, v{vKa}")
            for r, inc in ((vEa, vEi), (vVa, vVi)):
                a(f"v_add_u32 v{r}, v{r}, v{inc}")
                a(f"v_subrev_u32 v{r}, 1024, v{r}")
            a.label(f"L_a_fb{ps}_same")
            if ps == 0:
                maxtree(vt0, vS[0], 16, False)
                maxtree(vt0, vS[1], 16, False)
            else:
                for t in range(2):
                    for i in range(16):
                        a(f"v_sub_f32 v{vS[t]+i}, v{vS[t]+i}, v{vt0}")
                    EXP(t, 0, 16)
                a("s_nop 1")
                PV1(0); PV2(0); PV1(1); PV2(1)
            a("s_cmp_lt_u32 s56, 32")
            a(f"s_cbranch_scc1 L_a_fb{ps}")
            if ps == 0:
                xhalf_max(vt0, vt1)
                rewind(4)
                for i in range(16):
                    a(f"v_mov_b32 v{vO+i}, 0")
        a("s_nop 15")
        bcast_l()
        a("s_branch L_a_store")
    return 224, fallback
```

```python
from fcommon import *
import f_ssm, f_attn
SLOT = 32768
NS = 4

def gen_qkv(a, st):
    AH = env("AH", 2)
    a("s_and_b32 s44, s42, 3")
    a("s_lshl_b32 s44, s44, 2")
    a("s_and_b32 s45, s43, 3")
    a("s_add_u32 s44, s44, s45")
    a("s_lshl_b32 s44, s44, 7")
    a("s_lshr_b32 s45, s42, 2")
    a("s_mul_i32 s45, s45, 7")
    a("s_lshr_b32 s46, s43, 2")
    a("s_add_u32 s45, s45, s46")
    a("s_lshl_b32 s45, s45, 7")
    srd(a, SRD_A, P_X, 2048*1152); srd(a, SRD_B, P_WQKV, 576*3456)
    a(f"s_cmp_lt_u32 s{S_WAVE}, 4")
    a("s_cbranch_scc1 L_g_compute")
    R = Regs(V0)
    t0, t1, t2, t3 = [R.alloc() for _ in range(4)]
    vX = [R.alloc() for _ in range(2)]
    vW = [R.alloc() for _ in range(2)]
    a(f"s_sub_u32 s46, s{S_WAVE}, 4")
    a(f"v_lshrrev_b32 v{t0}, 3, v0")
    a(f"v_and_b32 v{t1}, 7, v0")
    a(f"v_lshrrev_b32 v{t2}, 4, v0")
    a(f"v_xor_b32 v{t3}, v{t2}, v{t1}")
    a(f"v_mul_u32_u24 v{vX[0]}, {8*1152}, v{t0}")
    a(f"v_lshl_add_u32 v{vX[0]}, v{t3}, 4, v{vX[0]}")
    a(f"v_xor_b32 v{vX[1]}, 64, v{vX[0]}")
    a(f"v_add_u32 v{vX[1]}, {64*1152}, v{vX[1]}")
    a("s_lshl_b32 s47, s46, 1")
    a("s_add_u32 s47, s47, s44")
    a("s_mul_i32 s47, s47, 1152")
    a(f"v_and_b32 v{t1}, 15, v0")
    a(f"v_lshlrev_b32 v{t3}, 1, v{t2}")
    a(f"v_xor_b32 v{t3}, v{t3}, v{t1}")
    a(f"v_mul_u32_u24 v{vW[0]}, 3456, v{t2}")
    a(f"v_lshl_add_u32 v{vW[0]}, v{t3}, 4, v{vW[0]}")
    a(f"v_xor_b32 v{t3}, 8, v{t3}")
    a(f"v_mul_u32_u24 v{vW[1]}, 3456, v{t2}")
    a(f"v_lshl_add_u32 v{vW[1]}, v{t3}, 4, v{vW[1]}")
    a("s_lshr_b32 s48, s46, 1")
    a("s_lshl_b32 s48, s48, 5")
    a("s_and_b32 s49, s46, 1")
    a("s_lshl_b32 s49, s49, 2")
    a("s_add_u32 s48, s48, s49")
    a("s_mul_i32 s48, s48, 3456")
    a("s_lshl_b32 s49, s45, 1")
    a("s_add_u32 s48, s48, s49")
    a("s_lshl_b32 s50, s46, 12")
    def issue(s):
        slot = ((s + 3) % NS) * SLOT
        for i in range(4):
            a(f"s_add_u32 m0, s50, {slot + 16384 + 1024*i}")
            a(f"s_add_u32 s52, s48, {(64*s + 8*i)*3456}")
            a(f"buffer_load_dwordx4 v{vW[i&1]}, s[{SRD_B}:{SRD_B+3}], s52 offen lds")
            a(f"s_add_u32 m0, s50, {slot + 1024*i}")
            a(f"s_add_u32 s51, s47, {128*s + 1152*(i>>1)}")
            a(f"buffer_load_dwordx4 v{vX[i&1]}, s[{SRD_A}:{SRD_A+3}], s51 offen lds")
    issue(0); issue(1)
    f_ssm.load_params(a, t0)
    class Rec(Asm): pass
    h = Asm()
    f_attn.attn_hoist(h, t0, t1, t2, t3)
    h2 = Asm()
    f_ssm.conv_hoist(h2, t1, t2, t3)
    f_ssm.u_pads(h2, t1, 18, f_ssm.UB)
    vals, _ = f_ssm.kgen_values()
    vals = ["    " + x for x in vals]
    n1, n2 = env("SL1", 50), env("SL2", 90)
    slices = {-1: h.lines, 6: h2.lines + vals[:n1], 7: vals[n1:n1+n2], 8: vals[n1+n2:]}
    a.lines += slices[-1]
    order = [("st", 0), ("st", 1), ("par", 0)]
    nxt = 2
    for s in range(9):
        k = order.index(("st", s))
        out = sum(8 if o[0] == "st" else (6 if o[0] == "par" else 1) for o in order[k+1:])
        if s == 8: out = 0
        a(f"s_waitcnt vmcnt({out})")
        a("s_barrier")
        while nxt <= min(8, s + AH):
            issue(nxt); order.append(("st", nxt)); nxt += 1
        if s == 7:
            a("s_mov_b64 exec, 1")
            a(f"buffer_load_dwordx2 v[16:17], off, s[{SRD_DBG}:{SRD_DBG+3}], 0 offset:128 sc1")
            a("s_mov_b64 exec, -1")
        if s == 8:
            a("v_readfirstlane_b32 s59, v16")
            a("v_readfirstlane_b32 s61, v17")
            a(f"s_bitcmp0_b32 s{S_WAVE}, 0")
            a("s_cbranch_scc1 L_g_even")
            a("s_cmp_lg_u32 s61, 0")
            a("s_cbranch_scc1 L_g_init")
            a("s_movk_i32 s44, 132")
            poll(a, SRD_DBG, "s44", 1, 16)
            a.label("L_g_init")
            lds_inc(a, 16, 16, 17)
            a("s_cmp_eq_u32 s59, 0")
            a("s_cbranch_scc1 L_g_even")
            f_ssm.ugather(a, 16)
            a.label("L_g_even")
        if s in slices: a.lines += slices[s]
    a("s_branch L_k_dump")
    a.label("L_g_compute")
    R = Regs(V0)
    vXa = [[R.alloc() for _ in range(2)] for _ in range(2)]
    vWa = [[R.alloc() for _ in range(2)] for _ in range(2)]
    vOff = R.alloc()
    FX = [[R.alloc(4, 4) for _ in range(8)] for _ in range(2)]
    FW = [[R.alloc(4, 4) for _ in range(2)] for _ in range(2)]
    ACC = [[R.alloc(4, 4) for _ in range(8)] for _ in range(2)]
    t0, t1, t2, t3 = [FX[1][0] + i for i in range(4)]
    a(f"s_lshl_b32 s46, s2, 2")
    a(f"s_add_u32 s46, s46, s{S_WAVE}")
    a("s_cmp_lg_u32 s46, 3")
    a("s_cbranch_scc1 L_g_nozero")
    a.c("workgroup 0, wave 3: clear the hand-off words in ws, then say so in d_debug")
    a(f"v_lshlrev_b32 v{t0}, 7, v0")
    a(f"v_mov_b32 v{t1}, 0")
    a(f"v_mov_b32 v{t2}, 1")
    a(f"s_mov_b32 s46, {WS_CNT:#x}")
    a(f"buffer_store_dword v{t1}, v{t0}, s[{SRD_WS}:{SRD_WS+3}], s46 offen sc1")
    a("s_waitcnt vmcnt(0)")
    a("s_mov_b64 exec, 1")
    a(f"buffer_store_dword v{t2}, off, s[{SRD_DBG}:{SRD_DBG+3}], 0 offset:132 sc1")
    a("s_mov_b64 exec, -1")
    a.label("L_g_nozero")
    if env("IPF", 1):
        a.c("pull the kernel's code into this XCD's L2 (speed only)")
        a("s_cmp_ge_u32 s43, 8")
        a("s_cbranch_scc1 L_g_noipf")
        a(f"s_cmp_lg_u32 s{S_WAVE}, 1")
        a("s_cbranch_scc1 L_g_noipf")
        a("s_getpc_b64 s[46:47]")
        a.label("L_g_pc")
        a("s_add_u32 s46, s46, L_code_start-L_g_pc")
        a("s_addc_u32 s47, s47, -1")
        a("s_lshl_b32 s48, s43, 6")
        a(f"v_add_u32 v{t0}, s48, v0")
        a(f"v_lshlrev_b32 v{t0}, 7, v{t0}")
        a(f"v_min_u32 v{t0}, L_code_end-L_code_start-4, v{t0}")
        a(f"global_load_dword v7, v{t0}, s[46:47]")
        a.label("L_g_noipf")
    if env("GPRIO", 1): a("s_setprio 1")
    f_attn.attn_hoist(a, t0, t1, t2, t3)
    a(f"v_and_b32 v{t0}, 15, v0")
    a(f"v_lshrrev_b32 v{t1}, 4, v0")
    a(f"v_bfe_u32 v{t2}, v0, 1, 3")
    a(f"v_xor_b32 v{t2}, v{t2}, v{t1}")
    a(f"v_lshlrev_b32 v{t3}, 7, v{t0}")
    a(f"v_lshl_add_u32 v{vXa[0][0]}, v{t2}, 4, v{t3}")
    a(f"v_xor_b32 v{vXa[0][1]}, 64, v{vXa[0][0]}")
    a(f"v_add_u32 v{vXa[1][0]}, {2*SLOT}, v{vXa[0][0]}")
    a(f"v_add_u32 v{vXa[1][1]}, {2*SLOT}, v{vXa[0][1]}")
    a(f"v_lshlrev_b32 v{vOff}, 14, v{t1}")
    a(f"v_lshl_add_u32 v{vOff}, v{t0}, 4, v{vOff}")
    a(f"v_lshrrev_b32 v{t2}, 2, v0")
    a(f"v_and_b32 v{t3}, 7, v{t2}")
    a(f"s_lshl_b32 s46, s{S_WAVE}, 1")
    a(f"v_xor_b32 v{t3}, s46, v{t3}")
    a(f"v_lshlrev_b32 v{t2}, 8, v{t2}")
    a(f"v_lshl_add_u32 v{t2}, v{t3}, 5, v{t2}")
    a(f"v_and_b32 v{t3}, 3, v0")
    a(f"v_lshl_add_u32 v{t2}, v{t3}, 3, v{t2}")
    a(f"v_add_u32 v{vWa[0][0]}, 16384, v{t2}")
    a(f"v_xor_b32 v{vWa[0][1]}, 32, v{vWa[0][0]}")
    a(f"v_add_u32 v{vWa[1][0]}, {2*SLOT}, v{vWa[0][0]}")
    a(f"v_add_u32 v{vWa[1][1]}, {2*SLOT}, v{vWa[0][1]}")
    a(f"s_lshl_b32 s46, s{S_WAVE}, 5")
    a("s_add_u32 s46, s46, s45")
    a("s_lshl_b32 s47, s46, 12")
    a("s_lshl_b32 s48, s44, 1")
    a("s_add_u32 s47, s47, s48")
    def reads(u):
        s, kk = u >> 1, u & 1
        sl = (s + 3) % NS; hf = sl >> 1; so = (sl & 1) * SLOT
        L = []
        for jj in range(2):
            for y in range(2):
                L.append(f"ds_read_b64_tr_b16 {vr(FW[u&1][jj]+2*y,2)}, v{vWa[hf][jj]} offset:{so + 8192*kk + 4096*y}")
        for i in range(8):
            L.append(f"ds_read_b128 {vr(FX[u&1][i],4)}, v{vXa[hf][kk]} offset:{so + 2048*i}")
        return L
    def mfmas(u):
        L = []
        for i in range(8):
            for jj in range(2):
                c = "0" if u == 0 else vr(ACC[jj][i], 4)
                L.append(f"v_mfma_f32_16x16x32_bf16 {vr(ACC[jj][i],4)}, {vr(FW[u&1][jj],4)}, {vr(FX[u&1][i],4)}, {c}")
        return L
    st.stamp(2)
    a("s_barrier")
    st.stamp(3)
    st.mark("b0")
    for l in reads(0): a(l)
    for u in range(18):
        a("s_waitcnt lgkmcnt(0)")
        rd = []
        if u + 1 < 18:
            if (u + 1) % 2 == 0: a("s_barrier")
            rd = reads(u + 1)
        if u == 17: lds_inc(a, 12, FX[0][0], FX[0][0]+1)
        for m in mfmas(u):
            a(m)
            if rd: a(rd.pop(0))
        assert not rd
    st.stamp(4)
    st.mark("gend")
    a("s_cmp_ge_u32 s46, 1728")
    a("s_cbranch_scc1 L_g_done")
    a("s_cmp_ge_u32 s46, 576")
    a("s_nop 5")
    a("s_cbranch_scc1 L_g_noscale")
    C = (18 ** -0.5) * 1.4426950408889634
    a(f"s_mov_b32 s48, {fb(C):#x}")
    a("s_mov_b32 s49, s48")
    for i in range(8):
        for jj in range(2):
            for h in range(2):
                r = ACC[jj][i] + 2*h
                a(f"v_pk_mul_f32 {vr(r,2)}, {vr(r,2)}, s[48:49]")
    a.label("L_g_noscale")
    n = 0
    for jj in range(2):
        for r in range(4):
            d = FX[0][n]; n += 1
            for q in range(4):
                a(f"v_cvt_pk_bf16_f32 v{d+q}, v{ACC[jj][2*q]+r}, v{ACC[jj][2*q+1]+r}")
            a(f"s_add_u32 s48, s47, {(16*jj + r)*4096}")
            a(f"buffer_store_dwordx4 {vr(d,4)}, v{vOff}, s[{SRD_WS}:{SRD_WS+3}], s48 offen sc1")
    a.label("L_g_done")
    if env("GPRIO", 1): a("s_setprio 0")
    return R.n

UTL = 69632
VU = 248
def gen_free(a, st):
    R = Regs(V0)
    t0, t1, t2, t3 = [R.alloc() for _ in range(4)]
    vU, vUo = VU, VU + 1
    srd(a, SRD_A, P_U, 2048*1152)
    a("s_sub_u32 s44, s43, 28")
    a("s_lshl_b32 s45, s42, 8")
    a(f"s_lshl_b32 s46, s{S_WAVE}, 5")
    a("s_add_u32 s45, s45, s46")
    a("s_mul_i32 s46, s45, 1152")
    a("s_mul_i32 s47, s44, 288")
    a("s_add_u32 s46, s46, s47")
    a(f"s_mul_i32 s48, s{S_WAVE}, 9216")
    a(f"s_add_u32 s48, s48, {UTL}")
    for i in range(9):
        a(f"v_add_u32 v{t0}, {64*i}, v0")
        a(f"v_mul_u32_u24 v{t1}, 3641, v{t0}")
        a(f"v_lshrrev_b32 v{t1}, 16, v{t1}")
        a(f"v_mul_u32_u24 v{t2}, {1152 - 288}, v{t1}")
        a(f"v_lshl_add_u32 v{t2}, v{t0}, 4, v{t2}")
        a(f"s_add_u32 m0, s48, {1024*i}")
        a("s_nop 0")
        a(f"buffer_load_dwordx4 v{t2}, s[{SRD_A}:{SRD_A+3}], s46 offen lds")
    for idv in range(576): assert (idv * 3641) >> 16 == idv // 18
    a(f"v_lshrrev_b32 v{t0}, 4, v0")
    a(f"v_bfe_u32 v{t1}, v0, 2, 2")
    a(f"v_lshl_add_u32 v{t1}, v{t0}, 3, v{t1}")
    a(f"v_mul_u32_u24 v{vU}, 288, v{t1}")
    a(f"v_and_b32 v{t1}, 3, v0")
    a(f"v_lshl_add_u32 v{vU}, v{t1}, 3, v{vU}")
    a(f"v_add_u32 v{vU}, s48, v{vU}")
    a(f"v_mul_u32_u24 v{vUo}, 9216, v{t0}")
    a(f"v_and_b32 v{t1}, 15, v0")
    a(f"v_lshl_add_u32 v{vUo}, v{t1}, 4, v{vUo}")
    a("s_lshr_b32 s61, s45, 3")
    a("s_mul_i32 s61, s61, 9216")
    a("s_mul_i32 s47, s44, 2304")
    a("s_add_u32 s61, s61, s47")
    a(f"s_add_u32 s61, s61, {WS_UT8:#x}")
    a("s_add_u32 s46, s2, 32")
    f_ssm.load_params(a, t0, 1, 46)
    f_ssm.load_params(a, t0, VU + 2)
    ut_finish(a)
    f_attn.attn_hoist(a, t0, t1, t2, t3)
    f_ssm.conv_hoist(a, t1, t2, t3)
    f_ssm.u_pads(a, t1, 18, f_ssm.UB)
    a("s_waitcnt vmcnt(0)")
    return VU + 8

def ut_finish(a):
    R = Regs(V0)
    R.alloc(12)
    F = [R.alloc(4, 4) for _ in range(9)]
    a("s_waitcnt vmcnt(12)")
    for half in range(2):
        js = range(0, 5) if half == 0 else range(5, 9)
        for j in js:
            for y in range(2):
                a(f"ds_read_b64_tr_b16 {vr(F[j]+2*y,2)}, v{VU} offset:{4*288*y + 32*j}")
        a("s_waitcnt lgkmcnt(0)")
        for j in js:
            a(f"buffer_store_dwordx4 {vr(F[j],4)}, v{VU+1}, s[{SRD_WS}:{SRD_WS+3}], s61 offen offset:{256*j} sc1")
```

```python
from fcommon import *
TP = 272
TAB = 64 * TP
LOG2E = 1.4426950408889634
CP = 4160
KC = 76800
RED = KC + 8 * CP
UB = RED + 8 * CP
VPK = 224
assert UB >= 131072 and UB + 9216 <= 153536
VC = 208

def load_params(a, tmp, dst=1, pair=S_PAIR):
    a(f"s_lshl_b32 s44, s{pair}, 1")
    a(f"s_bfe_u32 s45, s{S_WAVE}, 0x10001")
    a("s_add_u32 s44, s44, s45")
    a("s_lshl_b32 s45, s44, 8")
    a(f"v_lshlrev_b32 v{tmp}, 2, v0")
    a(f"v_add_u32 v{tmp}, s45, v{tmp}")
    a("s_lshl_b32 s45, s44, 1")
    a(f"v_mov_b32 v{tmp+1}, s45")
    a(f"global_load_ushort v{dst+0}, v{tmp+1}, s[{P_LDT}:{P_LDT+1}]")
    a(f"global_load_dword v{dst+1}, v{tmp}, s[{P_LAR}:{P_LAR+1}]")
    a(f"global_load_dword v{dst+2}, v{tmp}, s[{P_AIM}:{P_AIM+1}]")
    a(f"global_load_dword v{dst+3}, v{tmp}, s[{P_CRE}:{P_CRE+1}]")
    a(f"global_load_dword v{dst+4}, v{tmp}, s[{P_CIM}:{P_CIM+1}]")
    a(f"global_load_ushort v{dst+5}, v{tmp+1}, s[{P_DSK}:{P_DSK+1}]")

VT = 64
class Lines:
    def __init__(self): self.L = []
    def __call__(self, s): self.L.append(s)

def kgen_values():
    a = Lines()
    vDt, vLar, vAim, vCre, vCim, vDsk = 1, 2, 3, 4, 5, 6
    R = Regs(20)
    t0, t1, t2, t3 = [R.alloc() for _ in range(4)]
    vZr, vZi = R.alloc(), R.alloc()
    E1, E8, E64, E256 = [R.alloc(2) for _ in range(4)]
    G = [R.alloc(2) for _ in range(9)]
    H = [R.alloc(2) for _ in range(5)]
    assert R.n <= VT
    sL, sLl, sLn, sSh, sA, sB = 53, 54, 55, 56, 57, 58
    a(f"s_mov_b32 s{sL}, {fb(LOG2E):#x}")
    a(f"s_mov_b32 s{sLl}, {fb(LOG2E - struct.unpack('<f', struct.pack('<f', LOG2E))[0]):#x}")
    a(f"s_mov_b32 s{sLn}, {fb(math.log(2.0)):#x}")
    a(f"s_andn2_b32 s{sSh}, 1, s{S_WAVE}")
    a(f"s_lshl_b32 s{sSh}, s{sSh}, 4")
    def exp_bf16(dst, x, ta, tb):
        a(f"v_mul_f32 v{ta}, s{sL}, v{x}")
        a(f"v_exp_f32 v{dst}, v{ta}")
        a(f"v_fma_f32 v{tb}, v{x}, s{sL}, -v{ta}")
        a(f"v_fma_f32 v{tb}, v{x}, s{sLl}, v{tb}")
        a(f"v_mul_f32 v{tb}, s{sLn}, v{tb}")
        a(f"v_fma_f32 v{dst}, v{dst}, v{tb}, v{dst}")
        a(f"v_cvt_pk_bf16_f32 v{dst}, 0, v{dst}")
    def unpack(dst, src):
        a(f"v_lshlrev_b32 v{dst}, s{sSh}, v{src}")
        a(f"v_and_b32 v{dst}, 0xffff0000, v{dst}")
    a(f"v_lshlrev_b32 v{t3}, 16, v{vDt}")
    exp_bf16(vDt, t3, t0, t1)
    unpack(t3, vLar)
    exp_bf16(vZr, t3, t0, t1)
    unpack(vZi, vAim)
    a(f"v_mul_f32 v{vZr}, v{vZr}, v{vDt}")
    a(f"v_mul_f32 v{vZi}, v{vZi}, v{vDt}")
    a(f"v_mul_f32 v{vZr}, {fb(-LOG2E):#x}, v{vZr}")
    a(f"v_mul_f32 v{vZi}, 0.15915494, v{vZi}")
    for (E, p) in ((E1, 1.0), (E8, 8.0), (E64, 64.0), (E256, 256.0)):
        a(f"v_mul_f32 v{t0}, {fb(p):#x}, v{vZi}")
        a(f"v_mul_f32 v{t1}, {fb(p):#x}, v{vZr}")
        a(f"v_fract_f32 v{t0}, v{t0}")
        a(f"v_exp_f32 v{t1}, v{t1}")
        a(f"v_cos_f32 v{E}, v{t0}")
        a(f"v_sin_f32 v{E+1}, v{t0}")
        a(f"v_mul_f32 v{E}, v{E}, v{t1}")
        a(f"v_mul_f32 v{E+1}, v{E+1}, v{t1}")
    def cmul(d, x, y):
        a(f"v_pk_mul_f32 {vr(d,2)}, {vr(x,2)}, {vr(y,2)} op_sel:[0,0] op_sel_hi:[0,1]")
        a(f"v_pk_fma_f32 {vr(d,2)}, {vr(x,2)}, {vr(y,2)}, {vr(d,2)} op_sel:[1,1,0] op_sel_hi:[1,0,1] neg_lo:[1,0,0]")
    dump = []
    nxt = [VT]
    def put(src, rows, neg):
        c = nxt[0]; nxt[0] += 1
        a(f"v_cvt_pk_f16_f32 v{c}, v{src}, {'-' if neg else ''}v{src+1}")
        for r in rows: dump.append((c, r))
    rho = lambda h, r: 8*(r >> 2) + 4*h + (r & 3)
    Y = [[G[0], G[1]], [G[2], G[3]], [G[4], G[5]], [G[6], G[7]]]
    a(f"v_mov_b32 v{nxt[0]}, 0x3c00"); dump.append((nxt[0], 32)); nxt[0] += 1
    cmul(Y[2][0], E64, E64)
    put(E8, [33], False)
    cmul(Y[3][0], Y[2][0], E64)
    put(E64, [40], False); put(Y[2][0], [48], False); put(Y[3][0], [56], False)
    cur = [E8, E64, Y[2][0], Y[3][0]]; pos = [1, 0, 0, 0]; flip = [0, 0, 1, 1]
    for step in range(7):
        for c in range(4):
            if pos[c] < 7:
                d = Y[c][flip[c]]; flip[c] ^= 1
                cmul(d, cur[c], E8); cur[c] = d; pos[c] += 1
                put(d, [32 + 8*c + pos[c]], False)
    a(f"v_and_b32 v{t0}, 0x7fff7fff, v{vCre}")
    a(f"v_and_b32 v{t1}, 0x7fff7fff, v{vCim}")
    a(f"v_pk_max_u16 v{t0}, v{t0}, v{t1}")
    a(f"v_lshlrev_b32 v{t1}, 16, v{t0}")
    a(f"v_max_u32 v{t0}, v{t0}, v{t1}")
    for dpp in ("row_shr:1 row_mask:0xf", "row_shr:2 row_mask:0xf", "row_shr:4 row_mask:0xf", "row_shr:8 row_mask:0xf",
                "row_bcast:15 row_mask:0xa", "row_bcast:31 row_mask:0xc"):
        a("s_nop 1")
        a(f"v_max_u32_dpp v{t0}, v{t0}, v{t0} {dpp} bank_mask:0xf")
    unpack(G[0], vCre)
    a(f"v_readlane_b32 s{sA}, v{t0}, 63")
    unpack(G[0]+1, vCim)
    a(f"s_lshr_b32 s{sA}, s{sA}, 23")
    a(f"s_max_u32 s{sA}, s{sA}, 1")
    a(f"s_min_u32 s{sA}, s{sA}, 252")
    a(f"s_sub_u32 s{sB}, 254, s{sA}")
    a(f"s_lshl_b32 s{sB}, s{sB}, 23")
    a(f"s_add_u32 s{sA}, s{sA}, 1")
    a(f"s_lshl_b32 s{sA}, s{sA}, 23")
    a(f"v_mul_f32 v{G[0]}, s{sB}, v{G[0]}")
    a(f"v_mul_f32 v{G[0]+1}, s{sB}, v{G[0]+1}")
    a(f"v_mul_f32 v{vDt}, s{sA}, v{vDt}")
    for step in range(8):
        cmul(G[step+1], G[step], E1)
        put(G[step], [rho(0, step)], True)
    b1rows = {0: [rho(1,0), rho(1,1)], 1: [rho(1,2)], 2: [rho(1,3), rho(1,4), rho(1,5)], 3: [rho(1,6)], 4: [rho(1,7)]}
    for i in range(5): cmul(H[i], G[2*i], E256)
    for i in range(3):
        cmul(G[i], H[2*i], E256)
        put(H[2*i], b1rows[2*i], True)
    put(H[1], b1rows[1], True); put(H[3], b1rows[3], True)
    for i in range(3):
        cmul(H[i], G[i], E256)
        put(G[i], [rho(0, 8+i)], True)
    src = [H[0], H[2]]
    pend = [(H[i], [rho(1, 8+i)]) for i in range(3)]
    dsts = [[G[3], G[4]], [G[5], G[6]]]
    for B in range(4, 8):
        d = dsts[B & 1]
        for i in range(2): cmul(d[i], src[i], E256)
        for p in pend: put(p[0], p[1], True)
        h, r0 = B & 1, 12 + 2*((B - 4) >> 1)
        pend = [(d[i], [rho(h, r0+i)]) for i in range(2)]
        src = d
    for p in pend: put(p[0], p[1], True)
    return a.L, dump

def kgen_dump(a):
    _, dump = kgen_values()
    a(f"s_and_b32 s44, s{S_WAVE}, 3")
    a(f"s_mul_i32 s44, s44, {TAB}")
    a("s_mov_b32 m0, s44")
    a("s_nop 0")
    for (c, r) in dump:
        a(f"ds_write_addtid_b32 v{c} offset:{r*TP}")

def gen_kgen_mfma(a, st):
    vDt, vDsk = 1, 6
    R = Regs(V0)
    t0, t1, vRd, vL16 = [R.alloc() for _ in range(4)]
    FA = [R.alloc(4, 4) for _ in range(16)]
    FB = [R.alloc(4, 4) for _ in range(16)]
    ACC = R.alloc(16, 4)
    a(f"s_mul_i32 s45, s44, {2*TAB}")
    a(f"v_and_b32 v{t0}, 31, v0")
    a(f"v_mul_u32_u24 v{vRd}, {TP}, v{t0}")
    a(f"v_lshrrev_b32 v{t0}, 5, v0")
    a(f"v_lshl_add_u32 v{vRd}, v{t0}, 4, v{vRd}")
    a(f"v_add_u32 v{vRd}, s45, v{vRd}")
    def rd(ks):
        off = (ks >> 3) * TAB + 32 * (ks & 7)
        a(f"ds_read_b128 {vr(FA[ks],4)}, v{vRd} offset:{off}")
        a(f"ds_read_b128 {vr(FB[ks],4)}, v{vRd} offset:{off + 32*TP}")
    for ks in range(6): rd(ks)
    a(f"v_lshlrev_b32 v{vL16}, 4, v0")
    a(f"v_lshlrev_b32 v{vDsk}, 16, v{vDsk}")
    a("v_cmp_eq_u32 vcc, 0, v0")
    a(f"v_and_b32 v{t0}, 1, v0")
    a(f"s_mul_i32 s46, s44, {4*CP}")
    a(f"v_cndmask_b32 v{vDsk}, 0, v{vDsk}, vcc")
    a(f"v_cmp_eq_u32 vcc, 1, v{t0}")
    a(f"s_add_u32 s46, s46, {KC}")
    a(f"v_lshrrev_b32 v{t0}, 4, v0")
    a(f"v_mul_u32_u24 v{t0}, {CP}, v{t0}")
    a(f"v_and_b32 v{t1}, 15, v0")
    a(f"v_lshl_add_u32 v{t0}, v{t1}, 2, v{t0}")
    a(f"v_add_u32 v{t0}, s46, v{t0}")
    a(f"v_add_u32 v{vL16}, s46, v{vL16}")
    a(f"v_mov_b32 v{t1}, 0")
    for ks in range(16):
        left = min(16, ks + 6) - (ks + 1)
        a(f"s_waitcnt lgkmcnt({2*left})")
        c = "0" if ks == 0 else vr(ACC, 16)
        a(f"v_mfma_f32_32x32x16_f16 {vr(ACC,16)}, {vr(FA[ks],4)}, {vr(FB[ks],4)}, {c}")
        if ks + 6 < 16: rd(ks + 6)
    a(f"ds_write_b32 v{t0}, v{t1}")
    a("s_nop 10")
    a(f"v_fma_f32 v{ACC}, v{ACC}, v{vDt}, v{vDsk}")
    for i in range(1, 8): a(f"v_mul_f32 v{ACC+i}, v{ACC+i}, v{vDt}")
    pk = lambda d, x, y: a(f"v_cvt_pk_bf16_f32 v{d}, v{x}, v{y}")
    def st4(sl):
        a(f"ds_write_b128 v{vL16}, {vr(FA[sl],4)} offset:{64 + 1024*sl}")
        a(f"ds_read_b64 {vr(FB[sl],2)}, v{vL16} offset:{56 + 1024*sl}")
    for i in range(4): pk(FA[0]+i, ACC+2*i, ACC+2*i+1)
    st4(0)
    for i in range(8, 16):
        if i != 11: a(f"v_mul_f32 v{ACC+i}, v{ACC+i}, v{vDt}")
    pk(FA[1], ACC+8, ACC+8); pk(FA[1]+1, ACC+8, ACC+9); pk(FA[1]+2, ACC+9, ACC+9); pk(FA[1]+3, ACC+10, ACC+10)
    st4(1)
    for sl in range(2):
        x, y = ACC + 12 + 2*sl, ACC + 13 + 2*sl
        d = FA[2+sl]
        a(f"v_cndmask_b32 v{t0}, v{x}, v{y}, vcc")
        pk(d, x, x); pk(d+1, x, x); pk(d+2, t0, y); pk(d+3, y, y)
        st4(2 + sl)
    st.stamp(9)
    a.c("copies shifted by 1, 2, 3 elements")
    for sl in range(4):
        d, p = FA[sl], FB[sl]
        s1, s2, s3 = FA[4+3*sl], FA[5+3*sl], FA[6+3*sl]
        seq = [p, p+1, d, d+1, d+2, d+3]
        for i in range(1, 4): a(f"v_alignbit_b32 v{s1+i}, v{seq[i+2]}, v{seq[i+1]}, 16")
        for i in range(2, 4): a(f"v_alignbit_b32 v{s3+i}, v{seq[i+1]}, v{seq[i]}, 16")
        for i in range(1, 4): a(f"v_mov_b32 v{s2+i}, v{seq[i+1]}")
        a(f"s_waitcnt lgkmcnt({[6, 7, 8, 9][sl]})")
        a(f"v_alignbit_b32 v{s1}, v{seq[2]}, v{seq[1]}, 16")
        a(f"v_mov_b32 v{s2}, v{seq[1]}")
        for i in range(0, 2): a(f"v_alignbit_b32 v{s3+i}, v{seq[i+1]}, v{seq[i]}, 16")
        for x, r in ((1, s1), (2, s2), (3, s3)):
            a(f"ds_write_b128 v{vL16}, {vr(r,4)} offset:{64 + 1024*sl + x*CP}")
    a("s_waitcnt lgkmcnt(0)")
    return R.n

def u_pads(a, t1, z, ub):
    a(f"v_mov_b32 v{z}, 0")
    a(f"v_mov_b32 v{z+1}, 0")
    a(f"v_lshlrev_b32 v{t1}, 3, v0")
    a(f"v_add_u32 v{t1}, {ub}, v{t1}")
    for c in range(2):
        a(f"ds_write_b64 v{t1}, {vr(z,2)} offset:{c*4608}")

def ugather(a, t0):
    if env("NOGATHER", 0): return
    a(f"v_mul_u32_u24 v{t0}, 9216, v0")
    a(f"s_bfe_u32 s45, s{S_WAVE}, 0x10001")
    a(f"s_lshl_b32 s44, s{S_PAIR}, 1")
    a("s_add_u32 s44, s44, s45")
    a("s_lshl_b32 s44, s44, 4")
    a(f"s_add_u32 s44, s44, {WS_UT8:#x}")
    a("s_mul_i32 s45, s45, 4608")
    for i in range(4):
        a(f"s_add_u32 m0, s45, {UB + 512 + 1024*i}")
        if i: a(f"s_add_u32 s44, s44, {64*9216}")
        else: a("s_nop 0")
        a(f"buffer_load_dwordx4 v{t0}, s[{SRD_WS}:{SRD_WS+3}], s44 offen {os.environ.get('GLD', LD)} lds")

def poll_u(a, t):
    a("s_movk_i32 s44, 128")
    poll(a, SRD_DBG, "s44", 1, t, sleep=env("USLEEP", 4))

def conv_hoist(a, t1, t2, t3):
    vA, vB, vW, vR = [VC + i for i in range(4)]; vL = 180
    a(f"s_bfe_u32 s54, s{S_WAVE}, 0x10001")
    a(f"s_and_b32 s55, s{S_WAVE}, 1")
    a(f"s_mul_i32 s56, s54, {4*CP}")
    a("s_lshl_b32 s57, s55, 8")
    a(f"v_bfe_u32 v{t1}, v0, 2, 2")
    a(f"v_mul_u32_u24 v{vA}, {CP}, v{t1}")
    a(f"v_and_b32 v{t2}, 3, v0")
    a(f"v_lshl_add_u32 v{vA}, v{t2}, 3, v{vA}")
    a(f"v_and_b32 v{t2}, 48, v0")
    a(f"v_sub_u32 v{vA}, v{vA}, v{t2}")
    a("s_add_u32 s56, s56, s57")
    a(f"s_add_u32 s56, s56, {KC + 88}")
    a(f"v_add_u32 v{vA}, s56, v{vA}")
    a(f"v_and_b32 v{t3}, 15, v0")
    a(f"v_lshl_add_u32 v{vB}, v{t3}, 5, v{t2}")
    a("s_mul_i32 s56, s54, 4608")
    a("s_sub_u32 s56, s56, s57")
    a(f"s_add_u32 s56, s56, {UB + 32 + 256}")
    a(f"v_add_u32 v{vB}, s56, v{vB}")
    a(f"s_and_b32 s56, s{S_WAVE}, 3")
    a("s_lshl_b32 s56, s56, 13")
    a(f"s_add_u32 s56, s56, {RED}")
    a(f"v_add_u32 v{vW}, s56, v{vL}")
    a(f"v_bfe_u32 v{t1}, v0, 1, 4")
    a(f"v_lshlrev_b32 v{vR}, 4, v{t1}")
    a(f"v_and_b32 v{t1}, 1, v0")
    a(f"v_lshl_add_u32 v{vR}, v{t1}, 9, v{vR}")
    a(f"v_lshrrev_b32 v{t1}, 5, v0")
    a(f"v_lshl_add_u32 v{vR}, v{t1}, 10, v{vR}")
    a("s_lshl_b32 s56, s54, 14")
    a("s_lshl_b32 s57, s55, 12")
    a("s_add_u32 s56, s56, s57")
    a(f"s_add_u32 s56, s56, {RED}")
    a(f"v_add_u32 v{vR}, s56, v{vR}")

def gen_conv_main(a, st):
    R = Regs(V0)
    vA, vB, vW, vR = [VC + i for i in range(4)]; vL = 180
    FA = [[R.alloc(4, 4) for _ in range(8)] for _ in range(2)]
    FB = [[R.alloc(4, 4) for _ in range(8)] for _ in range(2)]
    ACC = [R.alloc(4, 4) for _ in range(8)]
    def rdA(mu, i): return [f"ds_read_b64_tr_b16 {vr(FA[mu&1][i]+2*y,2)}, v{vA} offset:{64*(mu + 8*i) + 8*(1-y)}" for y in range(2)]
    def rdB(mu, i): return [f"ds_read_b128 {vr(FB[mu&1][i],4)}, v{vB} offset:{64*(8*i - mu + 3)}"]
    def reads(mu):
        L = []
        for i in range(8): L += rdA(mu, i) + rdB(mu, i)
        return L
    def mf(mu, aa, t, first):
        c = "0" if first else vr(ACC[t], 4)
        return f"v_mfma_f32_16x16x32_bf16 {vr(ACC[t],4)}, {vr(FA[mu&1][aa],4)}, {vr(FB[mu&1][t-aa],4)}, {c}"
    for l in reads(0)[:15]: a(l)
    rest0 = reads(0)[15:]
    a(f"s_lshl_b32 s53, s{S_PAIR}, 13")
    a(f"s_and_b32 s54, s{S_WAVE}, 3")
    a("s_lshl_b32 s54, s54, 11")
    a("s_add_u32 s53, s53, s54")
    a(f"s_add_u32 s53, s53, {WS_YT:#x}")
    rd = rest0 + reads(1)
    issued = 15
    seen = set()
    for i in range(8):
        a(f"s_waitcnt lgkmcnt({min(15, issued - 3*(i+1))})")
        for aa in range(i + 1):
            for b in range(i + 1):
                if max(aa, b) == i and aa + b < 8:
                    t = aa + b
                    a(mf(0, aa, t, t not in seen)); seen.add(t)
                    if rd and issued - 3*(i+1) < 12:
                        a(rd.pop(0)); issued += 1
        while issued < min(24, 3*(i+2)):
            a(rd.pop(0)); issued += 1
    for l in rd: a(l)
    for mu in range(1, 4):
        a("s_waitcnt lgkmcnt(0)")
        rd = reads(mu + 1) if mu < 3 else []
        for aa in range(8):
            for t in range(aa, 8):
                a(mf(mu, aa, t, False))
                if rd: a(rd.pop(0))
                if mu == 3 and t == 7 and 2 <= aa <= 6:
                    a(f"ds_write_b128 v{vW}, {vr(ACC[aa-2],4)} offset:{1024*(aa-2)}")
        assert not rd
    a("s_nop 1")
    a(f"ds_write_b128 v{vW}, {vr(ACC[5],4)} offset:{1024*5}")
    a("s_nop 3")
    a(f"ds_write_b128 v{vW}, {vr(ACC[6],4)} offset:{1024*6}")
    a("s_nop 0")
    a(f"ds_write_b128 v{vW}, {vr(ACC[7],4)} offset:{1024*7}")
    a("s_waitcnt lgkmcnt(0)")
    st.stamp(13)
    a("s_barrier")
    a(f"s_cmp_lg_u32 s{S_ROUND}, 0")
    a("s_cbranch_scc1 L_x_red")
    for i in range(2):
        for p in range(2):
            for e in range(2):
                a(f"ds_read_b128 {vr(FA[i][2*p+e],4)}, v{vR} offset:{2048*i + 8192*p + 256*e}")
    for i in range(2):
        a(f"s_waitcnt lgkmcnt({4*(1-i)})")
        for e in range(2):
            for h in range(2):
                a(f"v_pk_add_f32 {vr(FA[i][e]+2*h,2)}, {vr(FA[i][e]+2*h,2)}, {vr(FA[i][2+e]+2*h,2)}")
        for e in range(2):
            for h in range(2):
                a(f"v_cvt_pk_bf16_f32 v{FB[0][i]+2*e+h}, v{FA[i][e]+2*h}, v{FA[i][e]+2*h+1}")
        a(f"buffer_store_dwordx4 {vr(FB[0][i],4)}, v{vL}, s[{SRD_WS}:{SRD_WS+3}], s53 offen offset:{1024*i} sc1")
    return R.n

def park(a, t0):
    a(f"s_mul_i32 s44, s{S_WAVE}, {CP}")
    a(f"s_add_u32 s44, s44, {KC}")
    a(f"v_add_u32 v{t0}, s44, v180")
    for i in range(5):
        a(f"ds_read_b128 {vr(VPK+4*i,4)}, v{t0} offset:{1024*i}")
    a(f"v_mul_u32_u24 v{t0+1}, 9216, v0")
    a("s_sub_u32 s44, s2, 224")
    a("s_lshl_b32 s44, s44, 5")
    a(f"s_lshr_b32 s45, s{S_WAVE}, 2")
    a("s_lshl_b32 s45, s45, 4")
    a("s_add_u32 s44, s44, s45")
    a(f"s_and_b32 s45, s{S_WAVE}, 3")
    a(f"s_mul_i32 s45, s45, {64*9216}")
    a("s_add_u32 s44, s44, s45")
    a(f"s_add_u32 s44, s44, {WS_UT8 + 512*16:#x}")
    a(f"buffer_load_dwordx4 {vr(VPK+20,4)}, v{t0+1}, s[{SRD_WS}:{SRD_WS+3}], s44 offen {LD}")

def gen_extra(a, st):
    R = Regs(V0)
    t0, t1 = R.alloc(), R.alloc()
    z = R.alloc(2)
    a(f"s_mul_i32 s44, s{S_WAVE}, {CP}")
    a(f"s_add_u32 s44, s44, {KC}")
    a(f"v_add_u32 v{t0}, s44, v180")
    for i in range(4):
        a(f"ds_write_b128 v{t0}, {vr(VPK+4*i,4)} offset:{1024*i}")
    a("s_mov_b64 exec, 15")
    a(f"ds_write_b128 v{t0}, {vr(VPK+16,4)} offset:4096")
    a("s_mov_b64 exec, -1")
    a(f"s_lshr_b32 s44, s{S_WAVE}, 2")
    a("s_mul_i32 s44, s44, 4608")
    a(f"s_and_b32 s45, s{S_WAVE}, 3")
    a("s_lshl_b32 s45, s45, 10")
    a("s_add_u32 s44, s44, s45")
    a(f"s_add_u32 s44, s44, {UB + 512}")
    a(f"v_add_u32 v{t0}, s44, v180")
    a(f"ds_write_b128 v{t0}, {vr(VPK+20,4)}")
    u_pads(a, t1, z, UB)
    a(f"s_mov_b32 s{S_ROUND}, 1")
    a("s_waitcnt lgkmcnt(0)")
    a("s_barrier")
    a(f"s_cmp_ge_u32 s{S_WAVE}, 4")
    a("s_cbranch_scc1 L_conv")
    a("s_barrier")
    a.label("L_x_red")
    F = [R.alloc(4, 4) for _ in range(4)]
    srd(a, SRD_A, P_OUT, 2048*2304)
    a(f"s_lshl_b32 s44, s{S_WAVE}, 10")
    a(f"s_add_u32 s44, s44, {RED}")
    a(f"v_add_u32 v{t0}, s44, v180")
    for i in range(4):
        a(f"ds_read_b128 {vr(F[i],4)}, v{t0} offset:{8192*i}")
    a(f"v_and_b32 v{t1}, 15, v0")
    a(f"v_lshlrev_b32 v{t1}, 2, v{t1}")
    a(f"v_lshrrev_b32 v{z}, 4, v0")
    a(f"v_add_u32 v{t1}, v{t1}, v{z}")
    a(f"v_mul_u32_u24 v{t1}, {4*2304}, v{t1}")
    a(f"s_mul_i32 s44, s{S_WAVE}, {256*2304}")
    a("s_lshl_b32 s45, s2, 2")
    a("s_add_u32 s44, s44, s45")
    a(f"s_add_u32 s44, s44, {1152 + 1024 - 4*224}")
    a(f"s_add_u32 s45, s44, {2*2304}")
    a("s_waitcnt lgkmcnt(0)")
    for c in range(2):
        for h in range(2):
            a(f"v_pk_add_f32 {vr(F[2*c]+2*h,2)}, {vr(F[2*c]+2*h,2)}, {vr(F[2*c+1]+2*h,2)}")
    for r in range(4):
        a(f"v_cvt_pk_bf16_f32 v{F[1]+r}, v{F[0]+r}, v{F[2]+r}")
    for r in range(4):
        a(f"buffer_store_dword v{F[1]+r}, v{t1}, s[{SRD_A}:{SRD_A+3}], s{44 + (r>>1)} offen offset:{2304*(r&1)}")
    return VPK + 24
```

```python
from fcommon import *
import f_attn
from f_attn import PREG, vPM, vPE, S_PN, S_PB, S_PS, vD
PW = 224
WLDS = 576 * PW
STG = WLDS
vPL = 189

_th = [0]
def tail_hoist(a, t0, t1, t2, t3):
    w = S_WAVE
    _th[0] += 1
    L = f"L_th{_th[0]}"
    a("s_cmp_ge_u32 s2, 192")
    a(f"s_cbranch_scc1 {L}_y")
    a(f"s_max_u32 s58, s{w}, 2")
    a("s_lshl_b32 s58, s58, 6")
    a("s_sub_u32 s58, s58, 128")
    a(f"v_add_u32 v{t0}, s58, v0")
    a(f"v_mul_u32_u24 v{t1}, 5462, v{t0}")
    a(f"v_lshrrev_b32 v{t1}, 16, v{t1}")
    a(f"v_lshlrev_b32 v{vPL}, 4, v{t0}")
    a(f"v_lshl_add_u32 v{vPL}, v{t1}, 5, v{vPL}")
    a(f"v_mul_u32_u24 v{t2}, 12, v{t1}")
    a(f"v_sub_u32 v{t0}, v{t0}, v{t2}")
    a(f"v_lshrrev_b32 v{t2}, 4, v{t1}")
    a(f"v_and_b32 v{t3}, 3, v{t1}")
    a(f"v_lshl_add_u32 v{t2}, v{t2}, 2, v{t3}")
    a(f"v_bfe_u32 v{t1}, v{t1}, 2, 2")
    a(f"v_lshrrev_b32 v{t3}, 1, v{t1}")
    a(f"v_mul_u32_u24 v{vPM}, 18, v{t3}")
    a(f"v_and_b32 v{t3}, 1, v{t1}")
    a(f"v_lshl_add_u32 v{vPM}, v{t3}, 3, v{vPM}")
    a(f"v_add_u32 v{vPM}, v{vPM}, v{t2}")
    a(f"v_mul_u32_u24 v{vPM}, 1152, v{vPM}")
    a(f"v_lshl_add_u32 v{vPM}, v{t0}, 4, v{vPM}")
    a(f"v_lshrrev_b32 v{t3}, 1, v{t2}")
    a(f"v_lshl_add_u32 v{t3}, v{t1}, 2, v{t3}")
    a(f"v_mul_u32_u24 v{vPE}, 18, v{t3}")
    a(f"v_and_b32 v{t3}, 1, v{t2}")
    a(f"v_add3_u32 v{vPE}, v{vPE}, v{t3}, 16")
    a(f"v_mul_u32_u24 v{vPE}, 1152, v{vPE}")
    a(f"v_lshl_add_u32 v{vPE}, v{t0}, 4, v{vPE}")
    for idv in range(384): assert (idv * 5462) >> 16 == idv // 12
    a(f"s_branch {L}_done")
    a.label(f"{L}_y")
    a(f"v_lshrrev_b32 v{vPM}, 3, v0")
    a(f"v_lshlrev_b32 v{vPM}, 12, v{vPM}")
    a(f"v_and_b32 v{t1}, 7, v0")
    a(f"v_lshl_add_u32 v{vPM}, v{t1}, 4, v{vPM}")
    a(f"v_mov_b32 v{vPE}, v{vPM}")
    a(f"v_mov_b32 v{vPL}, v{vD}")
    a.label(f"{L}_done")

def tail_setup(a):
    w = S_WAVE
    a("s_cmp_ge_u32 s2, 192")
    a("s_cbranch_scc1 L_ts_y")
    srd(a, SRD_B, P_WO, 576*1152)
    a(f"s_cmp_ge_u32 s{w}, 2")
    a(f"s_cselect_b32 s{SRD_B+2}, s{SRD_B+2}, 0")
    a(f"s_mov_b32 s{S_PN}, s{SRD_B+2}")
    a(f"s_lshr_b32 s{S_PB}, s2, 5")
    a(f"s_mul_i32 s{S_PB}, s{S_PB}, 192")
    a(f"s_mov_b32 s{S_PS}, {36*1152}")
    a("s_branch L_ts_done")
    a.label("L_ts_y")
    srd(a, SRD_B, P_WS, WS_BYTES)
    a("s_cmp_lt_u32 s2, 224")
    a(f"s_cselect_b32 s{SRD_B+2}, s{SRD_B+2}, 0")
    a(f"s_mov_b32 s{S_PN}, 0")
    a(f"s_sub_u32 s{S_PB}, s2, 192")
    a(f"s_lshl_b32 s{S_PB}, s{S_PB}, 7")
    a(f"s_lshl_b32 s58, s{w}, 18")
    a(f"s_add_u32 s{S_PB}, s{S_PB}, s58")
    a(f"s_add_u32 s{S_PB}, s{S_PB}, {WS_YT:#x}")
    a(f"s_mov_b32 s{S_PS}, {8*4096}")
    a.label("L_ts_done")

def gen_ytrans(a, st):
    R = Regs(V0)
    t0, t1, t2, vT, vW2, vR2, vO = [R.alloc() for _ in range(7)]
    F = [R.alloc(4, 4) for _ in range(8)]
    srd(a, SRD_A, P_OUT, 2048*2304)
    a(f"s_mul_i32 s46, s{S_WAVE}, {8320 + 9216}")
    a(f"v_add_u32 v{t0}, s46, v{vD}")
    for i in range(8):
        a(f"ds_write_b128 v{t0}, {vr(PREG[i],4)} offset:{1040*i}")
    a(f"v_lshrrev_b32 v{t0}, 4, v0")
    a(f"v_mul_u32_u24 v{vT}, 1040, v{t0}")
    a(f"v_bfe_u32 v{t2}, v0, 2, 2")
    a(f"v_lshl_add_u32 v{vT}, v{t2}, 7, v{vT}")
    a(f"v_and_b32 v{t1}, 3, v0")
    a(f"v_lshl_add_u32 v{vT}, v{t1}, 3, v{vT}")
    a(f"v_add_u32 v{vT}, s46, v{vT}")
    a("s_add_u32 s46, s46, 8320")
    a(f"v_and_b32 v{t1}, 15, v0")
    a(f"v_mul_u32_u24 v{vW2}, 144, v{t1}")
    a(f"v_lshl_add_u32 v{vW2}, v{t0}, 4, v{vW2}")
    a(f"v_add_u32 v{vW2}, s46, v{vW2}")
    a(f"v_lshrrev_b32 v{t0}, 3, v0")
    a(f"v_and_b32 v{t1}, 7, v0")
    a(f"v_mul_u32_u24 v{vR2}, 144, v{t0}")
    a(f"v_lshl_add_u32 v{vR2}, v{t1}, 4, v{vR2}")
    a(f"v_add_u32 v{vR2}, s46, v{vR2}")
    a(f"v_mul_u32_u24 v{vO}, 2304, v{t0}")
    a(f"v_lshl_add_u32 v{vO}, v{t1}, 4, v{vO}")
    a("s_sub_u32 s47, s2, 192")
    a(f"s_mul_i32 s47, s47, {64*2304}")
    a(f"s_lshl_b32 s48, s{S_WAVE}, 7")
    a("s_add_u32 s47, s47, s48")
    a("s_add_u32 s47, s47, 1152")
    for hf in range(2):
        for tg in (2*hf, 2*hf + 1):
            for j in range(2):
                for y in range(2):
                    a(f"ds_read_b64_tr_b16 {vr(F[2*tg+j]+2*y,2)}, v{vT} offset:{4160*j + 512*y + 32*tg}")
        a("s_waitcnt lgkmcnt(0)")
        for tg in (2*hf, 2*hf + 1):
            for j in range(2):
                a(f"ds_write_b128 v{vW2}, {vr(F[2*tg+j],4)} offset:{16*144*tg + 64*j}")
        for i in range(4*hf, 4*hf + 4):
            a(f"ds_read_b128 {vr(PREG[i],4)}, v{vR2} offset:{8*144*i}")
        for i in range(4*hf, 4*hf + 4):
            a(f"s_waitcnt lgkmcnt({4*hf + 3 - i})")
            a(f"s_add_u32 s48, s47, {8*2304*i}")
            a(f"buffer_store_dwordx4 {vr(PREG[i],4)}, v{vO}, s[{SRD_A}:{SRD_A+3}], s48 offen {OST}")
    return R.n

FX = [40 + 4*i for i in range(18)]
vXo, vEo = 32, 33
def x_loads(a):
    W = f"s[{SRD_WS}:{SRD_WS+3}]"
    for s in range(16):
        a(f"s_add_u32 s49, s47, {4*32768*s}")
        a(f"buffer_load_dwordx4 {vr(FX[s],4)}, v{vXo}, {W}, s49 offen {LD}")
    for e in range(2):
        for jj in range(4):
            a(f"s_add_u32 s49, s48, {(16*e + jj)*8192}")
            a(f"buffer_load_dword v{FX[16+e]+jj}, v{vEo}, {W}, s49 offen {LD}")

vPr, vPa = 190, 191
_pp = [0]
def probe(a, blocking):
    _pp[0] += 1
    L = f"L_pr{_pp[0]}"
    W = f"s[{SRD_WS}:{SRD_WS+3}]"
    a("s_cmp_lg_u32 s59, 0")
    a(f"s_cbranch_scc1 {L}_done")
    a("s_mov_b64 exec, 0xffffffff")
    a.label(L)
    a(f"buffer_load_dword v{vPr}, v{vPa}, {W}, s48 offen {LD}")
    a("s_add_u32 s60, s60, 1")
    a("s_waitcnt vmcnt(0)")
    a(f"v_cmp_eq_u32 vcc, -1, v{vPr}")
    a(f"s_cbranch_vccz {L}_ok")
    if blocking:
        if env("XRS", 1): a(f"s_sleep {env('XRS', 1)}")
        a(f"s_cmp_lt_u32 s60, {env('POLLMAX', 0x4000):#x}")
        a(f"s_cbranch_scc1 {L}")
    else:
        a("s_mov_b64 exec, -1")
        a(f"s_branch {L}_done")
    a.label(f"{L}_ok")
    a("s_mov_b64 exec, -1")
    a("s_mov_b32 s59, 1")
    a("s_call_b64 s[56:57], L_p_xl")
    a.label(f"{L}_done")

def proj_pre(a):
    t0, t1 = 34, 35
    a("s_and_b32 s44, s2, 7")
    a("s_lshl_b32 s44, s44, 2")
    a("s_bfe_u32 s46, s2, 0x20003")
    a("s_add_u32 s44, s44, s46")
    a("s_lshl_b32 s44, s44, 6")
    a(f"v_and_b32 v{t0}, 15, v0")
    a(f"v_lshrrev_b32 v{t1}, 4, v0")
    a(f"v_lshlrev_b32 v{vXo}, 15, v{t1}")
    a(f"v_lshl_add_u32 v{vEo}, v{t0}, 2, v{vXo}")
    a(f"v_lshl_add_u32 v{vXo}, v{t0}, 4, v{vXo}")
    a(f"v_lshlrev_b32 v{vPa}, 13, v0")
    a(f"s_lshl_b32 s46, s{S_WAVE}, 4")
    a("s_add_u32 s46, s46, s44")
    a("s_lshl_b32 s47, s46, 4")
    a(f"s_add_u32 s47, s47, {WS_O8:#x}")
    a("s_lshl_b32 s48, s46, 2")
    a(f"s_add_u32 s48, s48, {WS_OEXT:#x}")
    a("s_mov_b32 s59, 0")
    a("s_mov_b32 s60, 0")

def gen_proj(a, st):
    t0, t1, t2, t3, vWa0, vWa1 = 34, 35, 36, 37, 38, 39
    ACC = [8 + 4*j for j in range(6)]
    ring = [112 + 4*i for i in range(16)] + [192 + 4*i for i in range(4)] + [224 + 4*i for i in range(4)]
    FW = [ring[6*k: 6*k + 6] for k in range(4)]
    a(f"v_add_u32 v{t2}, {9*32*PW}, v{vPL}")
    a(f"s_cmp_lt_u32 s{S_WAVE}, 2")
    a("s_cbranch_scc1 L_p_w01")
    for s in range(18):
        a(f"ds_write_b128 v{t2 if s >= 9 else vPL}, {vr(PREG[s],4)} offset:{(s % 9)*32*PW}")
        if s == env("PRB", 0):
            a(f"s_cmp_ge_u32 s{S_WAVE}, 4")
            a("s_cbranch_scc1 L_p_nopr")
            probe(a, False)
            a.label("L_p_nopr")
    a("s_branch L_p_now")
    a.label("L_p_w01")
    probe(a, False)
    probe(a, False)
    a.label("L_p_now")
    a(f"v_lshrrev_b32 v{t2}, 2, v0")
    a(f"v_mul_u32_u24 v{vWa0}, {PW}, v{t2}")
    a(f"v_and_b32 v{t2}, 3, v0")
    a(f"v_lshl_add_u32 v{vWa0}, v{t2}, 3, v{vWa0}")
    a(f"v_add_u32 v{vWa1}, {9*32*PW}, v{vWa0}")
    srd(a, SRD_A, P_OUT, 2048*2304)
    a("s_waitcnt lgkmcnt(0)")
    a("s_barrier")
    if env("PST", 1): st.stamp(2)
    a(f"s_cmp_ge_u32 s{S_WAVE}, 4")
    a("s_cbranch_scc1 L_end")
    def reads(s):
        b = vWa1 if s >= 9 else vWa0
        so = (s % 9) * 32 * PW
        return [f"ds_read_b64_tr_b16 {vr(FW[s&3][j]+2*y,2)}, v{b} offset:{so + 16*PW*y + 32*j}" for j in range(6) for y in range(2)]
    for s in range(3):
        for l in reads(s): a(l)
    probe(a, True)
    a.c("no X dword may still hold the marker")
    a.label("L_p_chk")
    for g in range(3):
        a(f"s_waitcnt vmcnt({(18, 12, 0)[g]})")
        r = FX[6*g]
        if g == 0:
            a(f"v_max3_u32 v{t2}, v{r}, v{r+1}, v{r+2}")
            a(f"v_max3_u32 v{t3}, v{r+3}, v{r+4}, v{r+5}")
            r += 6
        k = 0
        while r < FX[6*g] + 24:
            d = (t2, t3)[k & 1]; k += 1
            a(f"v_max3_u32 v{d}, v{d}, v{r}, v{r+1}"); r += 2
    a(f"v_max_u32 v{t2}, v{t2}, v{t3}")
    a(f"v_cmp_eq_u32 vcc, -1, v{t2}")
    a("s_cbranch_vccz L_p_go")
    a("s_add_u32 s60, s60, 1")
    a(f"s_cmp_ge_u32 s60, {env('POLLMAX', 0x4000):#x}")
    a("s_cbranch_scc1 L_p_go")
    a("s_call_b64 s[56:57], L_p_xl")
    a("s_branch L_p_chk")
    a.label("L_p_go")
    if env("PST", 1): st.stamp(3)
    for s in range(18):
        a(f"s_waitcnt lgkmcnt({0 if s == 17 else 12})")
        rd = reads(s + 3) if s + 3 < 18 else []
        for j in range(6):
            c = "0" if s == 0 else vr(ACC[j], 4)
            a(f"v_mfma_f32_16x16x32_bf16 {vr(ACC[j],4)}, {vr(FW[s&3][j],4)}, {vr(FX[s],4)}, {c}")
            for _ in range(2):
                if rd: a(rd.pop(0))
    if env("PST", 1): st.stamp(4)
    a(f"s_mul_i32 s47, s{S_WAVE}, {16*208}")
    a(f"s_add_u32 s47, s47, {STG}")
    a(f"v_mul_u32_u24 v{vXo}, 208, v{t0}")
    a(f"v_lshl_add_u32 v{vXo}, v{t1}, 3, v{vXo}")
    a(f"v_add_u32 v{vXo}, s47, v{vXo}")
    a("s_mul_i32 s48, s46, 2304")
    a("s_lshr_b32 s45, s2, 5")
    a("s_mul_i32 s45, s45, 192")
    a("s_add_u32 s48, s48, s45")
    for j in range(6):
        d = FW[0][j]
        a(f"v_cvt_pk_bf16_f32 v{d}, v{ACC[j]}, v{ACC[j]+1}")
        a(f"v_cvt_pk_bf16_f32 v{d+1}, v{ACC[j]+2}, v{ACC[j]+3}")
        a(f"ds_write_b64 v{vXo}, {vr(d,2)} offset:{32*j}")
    for i in range(3):
        a(f"v_add_u32 v{t2}, {64*i}, v0")
        a(f"v_mul_u32_u24 v{t3}, 5462, v{t2}")
        a(f"v_lshrrev_b32 v{t3}, 16, v{t3}")
        a(f"v_lshlrev_b32 v{t2}, 4, v{t2}")
        a(f"v_lshl_add_u32 v{FX[i]}, v{t3}, 4, v{t2}")
        a(f"v_add_u32 v{FX[i]}, s47, v{FX[i]}")
        a(f"v_mul_u32_u24 v{t3}, {2304-192}, v{t3}")
        a(f"v_add_u32 v{FX[i]+1}, v{t2}, v{t3}")
    a("s_waitcnt lgkmcnt(0)")
    for i in range(3):
        a(f"ds_read_b128 {vr(FX[4+i],4)}, v{FX[i]}")
    for i in range(3):
        a(f"s_waitcnt lgkmcnt({2-i})")
        a(f"buffer_store_dwordx4 {vr(FX[4+i],4)}, v{FX[i]+1}, s[{SRD_A}:{SRD_A+3}], s48 offen {OST}")
    return 244

def gen_retry(a):
    a.label("L_p_xl")
    x_loads(a)
    a("s_setpc_b64 s[56:57]")
```

```python
from asmlib import Asm, Regs, vr, sr, kernel_header, kernel_desc, srd, load_kernargs, STAMP_ON
from asmlib import P_X, P_WQKV, P_WO, P_U, P_LAR, P_AIM, P_CRE, P_CIM, P_LDT, P_DSK, P_OUT, P_DBG, P_WS
import struct, math, os
def fb(x): return struct.unpack("<I", struct.pack("<f", x))[0]
def env(n, d): return int(os.environ.get(n, d))

WS_QKVT = 0
WS_O8   = 0x700000
WS_OEXT = 0x900000
WS_KEXP = 0xA00000
WS_UT8  = 0xD00000
WS_YT   = 0x1000000
WS_STAMP = 0x1300000
WS_BYTES = 0x1400000
KP = 4224

S_WAVE = 3
SRD_WS = 4
SRD_A = 8
SRD_B = 12
SRD_DBG = 96
S_PAIR = 100
S_ROUND = 101
V_PAR = 1
V0 = 8

WS_CNT = 0x12C0000
CNT_Q, CNT_O, CNT_Y = WS_CNT, WS_CNT + 16*128, WS_CNT + 24*128
RDY = 32*128
OST = os.environ.get("OST", "")
LD = "sc1"

class Stamps:
    def __init__(self, a, base=64):
        self.a, self.base = a, base
    def stamp(self, i):
        op = "s_memrealtime" if os.environ.get("RT") else "s_memtime"
        if STAMP_ON(): self.a(f"{op} s[{self.base+2*i}:{self.base+2*i+1}]")
    def real(self, i):
        if STAMP_ON(): self.a(f"s_memrealtime s[{self.base+2*i}:{self.base+2*i+1}]")
    def clear(self):
        if STAMP_ON():
            for i in range(16): self.a(f"s_mov_b32 s{self.base+2*i}, 0")
    def mark(self, name):
        if os.environ.get("DIAG") == name: self.a("s_memrealtime s[90:91]")
    def flush(self):
        a = self.a
        d = os.environ.get("DIAG")
        if d:
            a("s_waitcnt vmcnt(0) lgkmcnt(0)")
            if d == "fix": a("s_add_u32 s92, s88, 6000")
            else:
                a("s_memrealtime s[92:93]")
                a("s_waitcnt lgkmcnt(0)")
                a("s_sub_u32 s90, s90, s88")
                a("s_add_u32 s92, s92, s90")
            a.label("L_diag")
            a("s_memrealtime s[94:95]")
            a("s_waitcnt lgkmcnt(0)")
            a("s_sub_u32 s94, s94, s92")
            a("s_cmp_lt_i32 s94, 0")
            a("s_cbranch_scc1 L_diag")
        if not STAMP_ON(): return
        a("s_waitcnt vmcnt(0)")
        self.stamp(14); self.real(15)
        a("s_mov_b64 exec, 1")
        a("s_waitcnt lgkmcnt(0)")
        a("s_lshl_b32 s59, s2, 4")
        a(f"s_add_u32 s59, s59, s{S_WAVE}")
        a("s_lshl_b32 s59, s59, 6")
        a(f"s_add_u32 s59, s59, {WS_STAMP:#x}")
        a("v_mov_b32 v8, 0")
        for i in range(16):
            a(f"v_mov_b32 v9, s{self.base+2*i}")
            a(f"buffer_store_dword v9, v8, s[{SRD_WS}:{SRD_WS+3}], s59 offen offset:{4*i}")

_sc = [0]
def arrive(a, srd_, soff):
    a("s_mov_b64 exec, 1")
    a("v_mov_b32 v7, 1")
    a(f"buffer_atomic_add v7, off, s[{srd_}:{srd_+3}], {soff} sc0 sc1")
    a("s_mov_b64 exec, -1")
def arrive_finish(a, srd_, srdy, total, wait=True):
    _sc[0] += 1
    L = f"L_arr{_sc[0]}"
    if wait: a("s_waitcnt vmcnt(0)")
    a("v_readfirstlane_b32 s60, v7")
    a("s_nop 3")
    a(f"s_cmp_lg_u32 s60, {total - 1}")
    a(f"s_cbranch_scc1 {L}")
    a("s_mov_b64 exec, 1")
    a(f"buffer_store_dword v7, off, s[{srd_}:{srd_+3}], {srdy} sc1")
    a("s_mov_b64 exec, -1")
    a.label(L)

_pc = [0]
def poll(a, srd_, soff, expect, vtmp, sleep=8, vaddr=None, lanes=1):
    _pc[0] += 1
    L = f"L_poll{_pc[0]}"
    a("s_mov_b32 s60, 0")
    a(f"s_mov_b64 exec, {(1 << lanes) - 1}")
    a.label(L)
    if vaddr is None: a(f"buffer_load_dword v{vtmp}, off, s[{srd_}:{srd_+3}], {soff} sc1")
    else: a(f"buffer_load_dword v{vtmp}, v{vaddr}, s[{srd_}:{srd_+3}], {soff} offen sc1")
    a("s_add_u32 s60, s60, 1")
    a("s_waitcnt vmcnt(0)")
    a(f"v_cmp_gt_u32 vcc, {expect}, v{vtmp}")
    a(f"s_cbranch_vccz {L}_ok")
    a(f"s_sleep {sleep}")
    a(f"s_cmp_lt_u32 s60, {env('POLLMAX', 0x4000):#x}")
    a(f"s_cbranch_scc1 {L}")
    a.label(f"{L}_ok")
    a("s_mov_b64 exec, -1")

FLAG = 153536
def lds_wait(a, off, expect, vaddr, vtmp):
    _pc[0] += 1
    L = f"L_lw{_pc[0]}"
    a(f"v_mov_b32 v{vaddr}, {FLAG}")
    a(f"s_branch {L}_t")
    a.label(L)
    a("s_sleep 1")
    a.label(f"{L}_t")
    a(f"ds_read_b32 v{vtmp}, v{vaddr} offset:{off}")
    a("s_waitcnt lgkmcnt(0)")
    a(f"v_cmp_gt_u32 vcc, {expect}, v{vtmp}")
    a(f"s_cbranch_vccnz {L}")
def lds_inc(a, off, vaddr, vtmp):
    a("s_mov_b64 exec, 1")
    a(f"v_mov_b32 v{vaddr}, {FLAG}")
    a(f"v_mov_b32 v{vtmp}, 1")
    a(f"ds_add_u32 v{vaddr}, v{vtmp} offset:{off}")
    a("s_mov_b64 exec, -1")
```

```python
import sys
from fcommon import *
import f_gemm, f_ssm, f_attn, f_tail
NAME = "concat_heads__mha_block__ssm_conv_s4d__prompt_kernel"
HEADER = open("concat_heads__mha_block__ssm_conv_s4d__prompt.s.ref").read().split("; Override launch")[0]

def build(out, as_list):
    a = Asm()
    st = Stamps(a)
    w = S_WAVE
    a.raw('.amdgcn_target "amdgcn-amd-amdhsa--gfx950"')
    a.raw(".text")
    kernel_header(a, NAME)
    a.label("L_code_start")
    a("s_cmp_ge_u32 s2, 256")
    a("s_cbranch_scc1 L_exit")
    st.clear()
    st.real(0); st.stamp(1)
    if os.environ.get("DIAG"):
        a("s_memrealtime s[88:89]")
        a("s_memrealtime s[90:91]")
    load_kernargs(a)
    a("v_lshrrev_b32 v1, 6, v0")
    a("v_and_b32 v0, 63, v0")
    a(f"v_readfirstlane_b32 s{w}, v1")
    a("s_and_b32 s42, s2, 7")
    a("s_lshr_b32 s43, s2, 3")
    a(f"s_lshl_b32 s{S_PAIR}, s42, 5")
    a(f"s_add_u32 s{S_PAIR}, s{S_PAIR}, s43")
    a(f"v_mov_b32 v8, {FLAG}")
    a("v_mov_b32 v10, 0")
    a("v_mov_b32 v11, 0")
    a("ds_write_b64 v8, v[10:11]")
    a("ds_write_b64 v8, v[10:11] offset:8")
    a("ds_write_b64 v8, v[10:11] offset:16")
    a("s_cmp_ge_u32 s43, 28")
    a(f"s_cselect_b32 s{S_ROUND}, 1, 0")
    a("s_waitcnt lgkmcnt(0)")
    if env("WSOFF", 0):
        a(f"s_add_u32 s{P_WS}, s{P_WS}, {env('WSOFF', 0) << 20:#x}")
        a(f"s_addc_u32 s{P_WS+1}, s{P_WS+1}, 0")
    srd(a, SRD_WS, P_WS, WS_BYTES)
    srd(a, SRD_DBG, P_DBG, 256)
    nv = []
    a(f"s_cmp_lg_u32 s{S_ROUND}, 0")
    a("s_cbranch_scc1 L_free")
    nv.append(f_gemm.gen_qkv(a, st))
    st.stamp(5)
    st.mark("ba")
    a.c("drain the QKV stores; the last of the four waves signals Q")
    a("s_waitcnt vmcnt(0)")
    a("s_mov_b64 exec, 1")
    a(f"v_mov_b32 v9, {FLAG}")
    a("v_mov_b32 v10, 1")
    a("ds_add_rtn_u32 v11, v9, v10")
    a("s_and_b32 s58, s2, 7")
    a("s_lshr_b32 s58, s58, 2")
    a("s_mul_i32 s58, s58, 7")
    a("s_lshr_b32 s57, s2, 5")
    a("s_add_u32 s58, s58, s57")
    a("s_lshl_b32 s58, s58, 7")
    a(f"s_add_u32 s58, s58, {CNT_Q:#x}")
    a("s_waitcnt lgkmcnt(0)")
    a("v_cmp_eq_u32 vcc, 3, v11")
    a("s_mov_b64 exec, -1")
    a("s_cbranch_vccz L_r_nosig")
    lds_wait(a, 16, 1, 9, 10)
    arrive(a, SRD_WS, "s58")
    a(f"s_add_u32 s58, s58, {RDY}")
    arrive_finish(a, SRD_WS, "s58", 16)
    a.label("L_r_nosig")
    st.stamp(7)
    a("s_mov_b32 s59, 4")
    nv.append(f_attn.gen_preload(a, st))
    st.stamp(13)
    a("s_barrier")
    a("s_branch L_attn")
    a.label("L_free")
    nv.append(f_gemm.gen_free(a, st))
    a("s_barrier")
    st.stamp(2)
    a(f"s_cmp_ge_u32 s{w}, 4")
    a("s_cbranch_scc1 L_f_hi")
    a(f"s_cmp_lg_u32 s{w}, 0")
    a("s_cbranch_scc1 L_f_lo")
    arrive(a, SRD_DBG, "0")
    a("s_movk_i32 s58, 128")
    arrive_finish(a, SRD_DBG, "s58", 32)
    a.label("L_f_lo")
    a("s_barrier")
    a("s_barrier")
    f_ssm.park(a, 8)
    a("s_waitcnt lgkmcnt(0)")
    lds_inc(a, 12, 8, 9)
    a("s_branch L_r_nosig")
    a.label("L_f_hi")
    for l in f_ssm.kgen_values()[0]: a(l)
    a(f"s_cmp_eq_u32 s{S_ROUND}, 0")
    a("s_mov_b32 s59, 1")
    a("s_cbranch_scc1 L_k_dump")
    f_ssm.kgen_dump(a)
    a("s_waitcnt lgkmcnt(0)")
    a("s_barrier")
    st.stamp(3)
    a(f"s_bitcmp1_b32 s{w}, 0")
    a("s_cbranch_scc1 L_f_odd")
    a("s_call_b64 s[62:63], L_k_mfma")
    a("s_branch L_f_j")
    a.label("L_f_odd")
    f_ssm.poll_u(a, 8)
    f_ssm.ugather(a, 8)
    a("s_movk_i32 s44, 132")
    poll(a, SRD_DBG, "s44", 1, 8)
    a.label("L_f_j")
    a(f"s_mov_b32 s{S_ROUND}, 0")
    for i in range(6): a(f"v_mov_b32 v{1+i}, v{f_gemm.VU+2+i}")
    a("s_barrier")
    st.stamp(4)
    f_ssm.park(a, 8)
    a("s_branch L_f_hi")
    a.label("L_k_dump")
    st.stamp(5)
    f_ssm.kgen_dump(a)
    a("s_waitcnt lgkmcnt(0)")
    lds_inc(a, 12, 8, 9)
    st.stamp(6)
    a(f"s_bitcmp1_b32 s{w}, 0")
    a("s_cbranch_scc1 L_k_odd")
    lds_wait(a, 12, 8, 8, 9)
    a("s_call_b64 s[62:63], L_k_mfma")
    a("s_branch L_k_j")
    a.label("L_k_odd")
    a("s_cmp_lg_u32 s59, 0")
    a("s_cbranch_scc1 L_k_j")
    f_ssm.poll_u(a, 8)
    f_ssm.ugather(a, 8)
    a.label("L_k_j")
    a("s_waitcnt vmcnt(0)")
    lds_inc(a, 8, 8, 9)
    st.stamp(7)
    lds_wait(a, 8, 4, 8, 9)
    st.stamp(8)
    a.label("L_conv")
    nv.append(f_ssm.gen_conv_main(a, st))
    a.label("L_attn")
    n, fallback = f_attn.gen_attn(a, st, f_tail.tail_setup); nv.append(n)
    a("s_waitcnt vmcnt(2)")
    a("s_cmp_ge_u32 s2, 192")
    a("s_cbranch_scc1 L_o_other")
    f_tail.proj_pre(a)
    a("s_barrier")
    st.mark("bo")
    nv.append(f_tail.gen_proj(a, st))
    a("s_branch L_end")
    a.label("L_o_other")
    a("s_barrier")
    st.mark("bo")
    a("s_cmp_lt_u32 s2, 224")
    a("s_cbranch_scc1 L_ytrans")
    nv.append(f_ssm.gen_extra(a, st))
    a("s_branch L_end")
    a.label("L_ytrans")
    nv.append(f_tail.gen_ytrans(a, st))
    a.label("L_end")
    st.flush()
    a.label("L_exit")
    a("s_endpgm")
    a.label("L_k_mfma")
    a(f"s_bfe_u32 s44, s{w}, 0x10001")
    nv.append(f_ssm.gen_kgen_mfma(a, st))
    a("s_setpc_b64 s[62:63]")
    fallback()
    f_tail.gen_retry(a)
    a.label("L_code_end")
    print("vgprs", nv, file=sys.stderr)
    if as_list: launch = f"; @launch kernel={NAME} grid=(256,1,1) block=(512,1,1) lds={f_attn.LDS_TOTAL}"
    else: launch = f"; @launch grid=(256,1,1) block=(512,1,1) lds={f_attn.LDS_TOTAL}"
    txt = HEADER + launch + "\n" + a.text() + '.section .rodata,"a"\n' + kernel_desc(NAME, max(nv), 102)
    open(out, "w").write(txt)

if __name__ == "__main__":
    build(sys.argv[1], len(sys.argv) > 2)
```

```python
from fcommon import *
import f_ssm, f_attn
SLOT = 32768
NS = 4

def gen_qkv(a, st):
    AH = env("AH", 2)
    a("s_and_b32 s44, s42, 3")
    a("s_lshl_b32 s44, s44, 2")
    a("s_and_b32 s45, s43, 3")
    a("s_add_u32 s44, s44, s45")
    a("s_lshl_b32 s44, s44, 7")
    a("s_lshr_b32 s45, s42, 2")
    a("s_mul_i32 s45, s45, 7")
    a("s_lshr_b32 s46, s43, 2")
    a("s_add_u32 s45, s45, s46")
    a("s_lshl_b32 s45, s45, 7")
    srd(a, SRD_A, P_X, 2048*1152); srd(a, SRD_B, P_WQKV, 576*3456)
    a(f"s_cmp_lt_u32 s{S_WAVE}, 4")
    a("s_cbranch_scc1 L_g_compute")
    R = Regs(V0)
    t0, t1, t2, t3 = [R.alloc() for _ in range(4)]
    vX = [R.alloc() for _ in range(2)]
    vW = [R.alloc() for _ in range(2)]
    a(f"s_sub_u32 s46, s{S_WAVE}, 4")
    a(f"v_lshrrev_b32 v{t0}, 3, v0")
    a(f"v_and_b32 v{t1}, 7, v0")
    a(f"v_lshrrev_b32 v{t2}, 4, v0")
    a(f"v_xor_b32 v{t3}, v{t2}, v{t1}")
    a(f"v_mul_u32_u24 v{vX[0]}, {8*1152}, v{t0}")
    a(f"v_lshl_add_u32 v{vX[0]}, v{t3}, 4, v{vX[0]}")
    a(f"v_xor_b32 v{vX[1]}, 64, v{vX[0]}")
    a(f"v_add_u32 v{vX[1]}, {64*1152}, v{vX[1]}")
    a("s_lshl_b32 s47, s46, 1")
    a("s_add_u32 s47, s47, s44")
    a("s_mul_i32 s47, s47, 1152")
    a(f"v_and_b32 v{t1}, 15, v0")
    a(f"v_lshlrev_b32 v{t3}, 1, v{t2}")
    a(f"v_xor_b32 v{t3}, v{t3}, v{t1}")
    a(f"v_mul_u32_u24 v{vW[0]}, 3456, v{t2}")
    a(f"v_lshl_add_u32 v{vW[0]}, v{t3}, 4, v{vW[0]}")
    a(f"v_xor_b32 v{t3}, 8, v{t3}")
    a(f"v_mul_u32_u24 v{vW[1]}, 3456, v{t2}")
    a(f"v_lshl_add_u32 v{vW[1]}, v{t3}, 4, v{vW[1]}")
    a("s_lshr_b32 s48, s46, 1")
    a("s_lshl_b32 s48, s48, 5")
    a("s_and_b32 s49, s46, 1")
    a("s_lshl_b32 s49, s49, 2")
    a("s_add_u32 s48, s48, s49")
    a("s_mul_i32 s48, s48, 3456")
    a("s_lshl_b32 s49, s45, 1")
    a("s_add_u32 s48, s48, s49")
    a("s_lshl_b32 s50, s46, 12")
    ROT = env("ROT", 1)
    if ROT:
        a.c("workgroups that share an x or W tile start at different K stages (first-touch misses spread out)")
        a("s_and_b32 s51, s43, 3")
        a(f"s_mul_i32 s51, s51, {env('ROTM', 2)}")
        a("s_lshr_b32 s52, s43, 2")
        a(f"s_mul_i32 s52, s52, {env('ROTN', 1)}")
        a("s_add_u32 s49, s51, s52")
        a("s_mul_i32 s51, s49, 57")
        a("s_lshr_b32 s51, s51, 9")
        a("s_mul_i32 s51, s51, 9")
        a("s_sub_u32 s49, s49, s51")
        for v in range(40): assert v - ((v * 57) >> 9) * 9 == v % 9
        a("s_lshl_b32 s51, s49, 7")
        a("s_add_u32 s47, s47, s51")
        a(f"s_mul_i32 s51, s49, {64*3456}")
        a("s_add_u32 s48, s48, s51")
    def issue(s):
        slot = ((s + 3) % NS) * SLOT
        ks = 0 if ROT else s
        for i in range(4):
            a(f"s_add_u32 m0, s50, {slot + 16384 + 1024*i}")
            a(f"s_add_u32 s52, s48, {(64*ks + 8*i)*3456}")
            a(f"buffer_load_dwordx4 v{vW[i&1]}, s[{SRD_B}:{SRD_B+3}], s52 offen lds")
            a(f"s_add_u32 m0, s50, {slot + 1024*i}")
            a(f"s_add_u32 s51, s47, {128*ks + 1152*(i>>1)}")
            a(f"buffer_load_dwordx4 v{vX[i&1]}, s[{SRD_A}:{SRD_A+3}], s51 offen lds")
        if ROT and s < 8:
            a("s_add_u32 s49, s49, 1")
            a("s_cmp_eq_u32 s49, 9")
            a(f"s_cselect_b32 s51, {-8*128 & 0xffffffff:#x}, s60")
            a("s_add_u32 s47, s47, s51")
            a("s_cmp_eq_u32 s49, 9")
            a(f"s_cselect_b32 s51, {-8*64*3456 & 0xffffffff:#x}, s61")
            a("s_add_u32 s48, s48, s51")
    a("s_movk_i32 s60, 128")
    a(f"s_mov_b32 s61, {64*3456}")
    issue(0); issue(1)
    f_ssm.load_params(a, t0)
    class Rec(Asm): pass
    h = Asm()
    f_attn.attn_hoist(h, t0, t1, t2, t3)
    h2 = Asm()
    f_ssm.conv_hoist(h2, t1, t2, t3)
    f_ssm.u_pads(h2, t1, 18, f_ssm.UB)
    vals, _ = f_ssm.kgen_values()
    vals = ["    " + x for x in vals]
    n1, n2 = env("SL1", 50), env("SL2", 90)
    slices = {-1: h.lines, 6: h2.lines + vals[:n1], 7: vals[n1:n1+n2], 8: vals[n1+n2:]}
    a.lines += slices[-1]
    order = [("st", 0), ("st", 1), ("par", 0)]
    nxt = 2
    for s in range(9):
        k = order.index(("st", s))
        out = sum(8 if o[0] == "st" else (6 if o[0] == "par" else 1) for o in order[k+1:])
        if s == 8: out = 0
        a(f"s_waitcnt vmcnt({out})")
        a("s_barrier")
        while nxt <= min(8, s + AH):
            issue(nxt); order.append(("st", nxt)); nxt += 1
        if s == 7:
            a("s_mov_b64 exec, 1")
            a(f"buffer_load_dwordx2 v[16:17], off, s[{SRD_DBG}:{SRD_DBG+3}], 0 offset:128 sc1")
            a("s_mov_b64 exec, -1")
        if s == 8:
            a("v_readfirstlane_b32 s59, v16")
            a("v_readfirstlane_b32 s61, v17")
            a(f"s_bitcmp0_b32 s{S_WAVE}, 0")
            a("s_cbranch_scc1 L_g_even")
            a("s_cmp_lg_u32 s61, 0")
            a("s_cbranch_scc1 L_g_init")
            a("s_movk_i32 s44, 132")
            poll(a, SRD_DBG, "s44", 1, 16)
            a.label("L_g_init")
            lds_inc(a, 16, 16, 17)
            a("s_cmp_eq_u32 s59, 0")
            a("s_cbranch_scc1 L_g_even")
            f_ssm.ugather(a, 16)
            a.label("L_g_even")
        if s in slices: a.lines += slices[s]
    a("s_branch L_k_dump")
    a.label("L_g_compute")
    R = Regs(V0)
    vXa = [[R.alloc() for _ in range(2)] for _ in range(2)]
    vWa = [[R.alloc() for _ in range(2)] for _ in range(2)]
    vOff = R.alloc()
    FX = [[R.alloc(4, 4) for _ in range(8)] for _ in range(2)]
    FW = [[R.alloc(4, 4) for _ in range(2)] for _ in range(2)]
    ACC = [[R.alloc(4, 4) for _ in range(8)] for _ in range(2)]
    t0, t1, t2, t3 = [FX[1][0] + i for i in range(4)]
    a(f"s_lshl_b32 s46, s2, 2")
    a(f"s_add_u32 s46, s46, s{S_WAVE}")
    a("s_cmp_lg_u32 s46, 3")
    a("s_cbranch_scc1 L_g_nozero")
    a.c("workgroup 0, wave 3: clear the hand-off words in ws, then say so in d_debug")
    a(f"v_lshlrev_b32 v{t0}, 7, v0")
    a(f"v_mov_b32 v{t1}, 0")
    a(f"v_mov_b32 v{t2}, 1")
    a(f"s_mov_b32 s46, {WS_CNT:#x}")
    a(f"buffer_store_dword v{t1}, v{t0}, s[{SRD_WS}:{SRD_WS+3}], s46 offen sc1")
    a("s_waitcnt vmcnt(0)")
    a("s_mov_b64 exec, 1")
    a(f"buffer_store_dword v{t2}, off, s[{SRD_DBG}:{SRD_DBG+3}], 0 offset:132 sc1")
    a("s_mov_b64 exec, -1")
    a.label("L_g_nozero")
    if env("IPF", 1):
        a.c("pull the kernel's code into this XCD's L2 (speed only)")
        a("s_cmp_ge_u32 s43, 8")
        a("s_cbranch_scc1 L_g_noipf")
        a(f"s_cmp_lg_u32 s{S_WAVE}, 1")
        a("s_cbranch_scc1 L_g_noipf")
        a("s_getpc_b64 s[46:47]")
        a.label("L_g_pc")
        a("s_add_u32 s46, s46, L_code_start-L_g_pc")
        a("s_addc_u32 s47, s47, -1")
        a("s_lshl_b32 s48, s43, 6")
        a(f"v_add_u32 v{t0}, s48, v0")
        a(f"v_lshlrev_b32 v{t0}, 7, v{t0}")
        a(f"v_min_u32 v{t0}, L_code_end-L_code_start-4, v{t0}")
        a(f"global_load_dword v7, v{t0}, s[46:47]")
        a.label("L_g_noipf")
    if env("GPRIO", 1): a("s_setprio 1")
    f_attn.attn_hoist(a, t0, t1, t2, t3)
    a(f"v_and_b32 v{t0}, 15, v0")
    a(f"v_lshrrev_b32 v{t1}, 4, v0")
    a(f"v_bfe_u32 v{t2}, v0, 1, 3")
    a(f"v_xor_b32 v{t2}, v{t2}, v{t1}")
    a(f"v_lshlrev_b32 v{t3}, 7, v{t0}")
    a(f"v_lshl_add_u32 v{vXa[0][0]}, v{t2}, 4, v{t3}")
    a(f"v_xor_b32 v{vXa[0][1]}, 64, v{vXa[0][0]}")
    a(f"v_add_u32 v{vXa[1][0]}, {2*SLOT}, v{vXa[0][0]}")
    a(f"v_add_u32 v{vXa[1][1]}, {2*SLOT}, v{vXa[0][1]}")
    a(f"v_lshlrev_b32 v{vOff}, 14, v{t1}")
    a(f"v_lshl_add_u32 v{vOff}, v{t0}, 4, v{vOff}")
    a(f"v_lshrrev_b32 v{t2}, 2, v0")
    a(f"v_and_b32 v{t3}, 7, v{t2}")
    a(f"s_lshl_b32 s46, s{S_WAVE}, 1")
    a(f"v_xor_b32 v{t3}, s46, v{t3}")
    a(f"v_lshlrev_b32 v{t2}, 8, v{t2}")
    a(f"v_lshl_add_u32 v{t2}, v{t3}, 5, v{t2}")
    a(f"v_and_b32 v{t3}, 3, v0")
    a(f"v_lshl_add_u32 v{t2}, v{t3}, 3, v{t2}")
    a(f"v_add_u32 v{vWa[0][0]}, 16384, v{t2}")
    a(f"v_xor_b32 v{vWa[0][1]}, 32, v{vWa[0][0]}")
    a(f"v_add_u32 v{vWa[1][0]}, {2*SLOT}, v{vWa[0][0]}")
    a(f"v_add_u32 v{vWa[1][1]}, {2*SLOT}, v{vWa[0][1]}")
    a(f"s_lshl_b32 s46, s{S_WAVE}, 5")
    a("s_add_u32 s46, s46, s45")
    a("s_lshl_b32 s47, s46, 12")
    a("s_lshl_b32 s48, s44, 1")
    a("s_add_u32 s47, s47, s48")
    def reads(u):
        s, kk = u >> 1, u & 1
        sl = (s + 3) % NS; hf = sl >> 1; so = (sl & 1) * SLOT
        L = []
        for jj in range(2):
            for y in range(2):
                L.append(f"ds_read_b64_tr_b16 {vr(FW[u&1][jj]+2*y,2)}, v{vWa[hf][jj]} offset:{so + 8192*kk + 4096*y}")
        for i in range(8):
            L.append(f"ds_read_b128 {vr(FX[u&1][i],4)}, v{vXa[hf][kk]} offset:{so + 2048*i}")
        return L
    def mfmas(u):
        L = []
        for i in range(8):
            for jj in range(2):
                c = "0" if u == 0 else vr(ACC[jj][i], 4)
                L.append(f"v_mfma_f32_16x16x32_bf16 {vr(ACC[jj][i],4)}, {vr(FW[u&1][jj],4)}, {vr(FX[u&1][i],4)}, {c}")
        return L
    st.stamp(2)
    a("s_barrier")
    st.stamp(3)
    st.mark("b0")
    for l in reads(0): a(l)
    for u in range(18):
        a("s_waitcnt lgkmcnt(0)")
        rd = []
        if u + 1 < 18:
            if (u + 1) % 2 == 0: a("s_barrier")
            rd = reads(u + 1)
        if u == 17: lds_inc(a, 12, FX[0][0], FX[0][0]+1)
        for m in mfmas(u):
            a(m)
            if rd: a(rd.pop(0))
        assert not rd
    st.stamp(4)
    st.mark("gend")
    a("s_cmp_ge_u32 s46, 1728")
    a("s_cbranch_scc1 L_g_done")
    a("s_cmp_ge_u32 s46, 576")
    a("s_nop 5")
    a("s_cbranch_scc1 L_g_noscale")
    C = (18 ** -0.5) * 1.4426950408889634
    a(f"s_mov_b32 s48, {fb(C):#x}")
    a("s_mov_b32 s49, s48")
    for i in range(8):
        for jj in range(2):
            for h in range(2):
                r = ACC[jj][i] + 2*h
                a(f"v_pk_mul_f32 {vr(r,2)}, {vr(r,2)}, s[48:49]")
    a.label("L_g_noscale")
    n = 0
    for jj in range(2):
        for r in range(4):
            d = FX[0][n]; n += 1
            for q in range(4):
                a(f"v_cvt_pk_bf16_f32 v{d+q}, v{ACC[jj][2*q]+r}, v{ACC[jj][2*q+1]+r}")
            a(f"s_add_u32 s48, s47, {(16*jj + r)*4096}")
            a(f"buffer_store_dwordx4 {vr(d,4)}, v{vOff}, s[{SRD_WS}:{SRD_WS+3}], s48 offen sc1")
    a.label("L_g_done")
    if env("GPRIO", 1): a("s_setprio 0")
    return R.n

UTL = 69632
VU = 248
def gen_free(a, st):
    R = Regs(V0)
    t0, t1, t2, t3 = [R.alloc() for _ in range(4)]
    vU, vUo = VU, VU + 1
    srd(a, SRD_A, P_U, 2048*1152)
    a("s_sub_u32 s44, s43, 28")
    a("s_lshl_b32 s45, s42, 8")
    a(f"s_lshl_b32 s46, s{S_WAVE}, 5")
    a("s_add_u32 s45, s45, s46")
    a("s_mul_i32 s46, s45, 1152")
    a("s_mul_i32 s47, s44, 288")
    a("s_add_u32 s46, s46, s47")
    a(f"s_mul_i32 s48, s{S_WAVE}, 9216")
    a(f"s_add_u32 s48, s48, {UTL}")
    for i in range(9):
        a(f"v_add_u32 v{t0}, {64*i}, v0")
        a(f"v_mul_u32_u24 v{t1}, 3641, v{t0}")
        a(f"v_lshrrev_b32 v{t1}, 16, v{t1}")
        a(f"v_mul_u32_u24 v{t2}, {1152 - 288}, v{t1}")
        a(f"v_lshl_add_u32 v{t2}, v{t0}, 4, v{t2}")
        a(f"s_add_u32 m0, s48, {1024*i}")
        a("s_nop 0")
        a(f"buffer_load_dwordx4 v{t2}, s[{SRD_A}:{SRD_A+3}], s46 offen lds")
    for idv in range(576): assert (idv * 3641) >> 16 == idv // 18
    a(f"v_lshrrev_b32 v{t0}, 4, v0")
    a(f"v_bfe_u32 v{t1}, v0, 2, 2")
    a(f"v_lshl_add_u32 v{t1}, v{t0}, 3, v{t1}")
    a(f"v_mul_u32_u24 v{vU}, 288, v{t1}")
    a(f"v_and_b32 v{t1}, 3, v0")
    a(f"v_lshl_add_u32 v{vU}, v{t1}, 3, v{vU}")
    a(f"v_add_u32 v{vU}, s48, v{vU}")
    a(f"v_mul_u32_u24 v{vUo}, 9216, v{t0}")
    a(f"v_and_b32 v{t1}, 15, v0")
    a(f"v_lshl_add_u32 v{vUo}, v{t1}, 4, v{vUo}")
    a("s_lshr_b32 s61, s45, 3")
    a("s_mul_i32 s61, s61, 9216")
    a("s_mul_i32 s47, s44, 2304")
    a("s_add_u32 s61, s61, s47")
    a(f"s_add_u32 s61, s61, {WS_UT8:#x}")
    a("s_add_u32 s46, s2, 32")
    f_ssm.load_params(a, t0, 1, 46)
    f_ssm.load_params(a, t0, VU + 2)
    ut_finish(a)
    f_attn.attn_hoist(a, t0, t1, t2, t3)
    f_ssm.conv_hoist(a, t1, t2, t3)
    f_ssm.u_pads(a, t1, 18, f_ssm.UB)
    a("s_waitcnt vmcnt(0)")
    return VU + 8

def ut_finish(a):
    R = Regs(V0)
    R.alloc(12)
    F = [R.alloc(4, 4) for _ in range(9)]
    a("s_waitcnt vmcnt(12)")
    for half in range(2):
        js = range(0, 5) if half == 0 else range(5, 9)
        for j in js:
            for y in range(2):
                a(f"ds_read_b64_tr_b16 {vr(F[j]+2*y,2)}, v{VU} offset:{4*288*y + 32*j}")
        a("s_waitcnt lgkmcnt(0)")
        for j in js:
            a(f"buffer_store_dwordx4 {vr(F[j],4)}, v{VU+1}, s[{SRD_WS}:{SRD_WS+3}], s61 offen offset:{256*j} sc1")
```
